```python
import torch

def _softmax(x, axis=-1):
    return torch.softmax(x, dim=axis)
def _gelu(x):
    return torch.nn.functional.gelu(x, approximate="tanh")
def _silu(x):
    return torch.nn.functional.silu(x)
def _sigmoid(x):
    return torch.sigmoid(x)
def _layernorm(x, axis=-1, eps=1e-5):
    m = x.mean(dim=axis, keepdim=True)
    v = x.var(dim=axis, keepdim=True, unbiased=False)
    return (x - m) / torch.sqrt(v + eps)
def _scatter_add(tgt, idx, src, axis=0):
    return tgt.clone().index_add_(axis, idx, src)
def _segment_sum(src, seg, n):
    out = torch.zeros((n,) + src.shape[1:], dtype=src.dtype)
    return out.index_add_(0, seg, src)
def _pad(x, pw):
    flat = tuple(v for pair in reversed(pw) for v in pair)
    return torch.nn.functional.pad(x, flat)

kernel_name = 'parallel_sum__gqa_block_cached__dense_activation_squared_relu__decode'

def setup_inputs():

    _w = (lambda a: (lambda t: t.to(torch.bfloat16) if t.is_floating_point() else t)(torch.as_tensor(a)))
    def _A_setup():
        B, Sq, D = 4, 1, 640
        Hq, Hkv, Sk, Dh = 32, 32, 8192, 128
        assert Hq % Hkv == 0, (Hq, Hkv)
        return {
            "x": _w((lambda *s: torch.randn(*s, dtype=torch.bfloat16) * 0.05)(B, Sq, D)),
            "k_cache": _w((lambda *s: torch.randn(*s, dtype=torch.bfloat16) * 1.6)(B, Hkv, Sk, Dh)),
            "v_cache": _w((lambda *s: torch.randn(*s, dtype=torch.bfloat16) * 3.2)(B, Hkv, Sk, Dh)),
            "wq": _w((lambda *s: torch.randn(*s, dtype=torch.bfloat16) * 1.6)(D, Hq * Dh) * (D ** -0.5)),
            "wo": _w((lambda *s: torch.randn(*s, dtype=torch.bfloat16) * 3.2)(Hq * Dh, D) * ((Hq * Dh) ** -0.5)),
        }
    _A_in = _A_setup()

    def _B_setup():
        B, S, D, F = 4, 1, 640, 1728
        return {
            "x": _w((lambda *s: torch.randn(*s, dtype=torch.bfloat16) * 0.05)(B, S, D)),
            "w1": _w((lambda *s: torch.randn(*s, dtype=torch.bfloat16) * 0.05)(D, F)),
            "b1": _w((lambda *s: torch.randn(*s, dtype=torch.bfloat16) * 0.4)(F)),
            "w2": _w((lambda *s: torch.randn(*s, dtype=torch.bfloat16) * 0.05)(F, D)),
            "b2": _w((lambda *s: torch.randn(*s, dtype=torch.bfloat16) * 1.6)(D)),
        }
    _B_in = _B_setup()

    return {
        "A_x": _A_in["x"],
        "A_k_cache": _A_in["k_cache"],
        "A_v_cache": _A_in["v_cache"],
        "A_wq": _A_in["wq"],
        "A_wo": _A_in["wo"],
        "B_x": _B_in["x"],
        "B_w1": _B_in["w1"],
        "B_b1": _B_in["b1"],
        "B_w2": _B_in["w2"],
        "B_b2": _B_in["b2"],
    }

def reference(A_x, A_k_cache, A_v_cache, A_wq, A_wo, B_x, B_w1, B_b1, B_w2, B_b2):
    def _A_ref(x, k_cache, v_cache, wq, wo):
        B, Sq, D = x.shape
        Hq, Dh = 32, 128
        Hkv = k_cache.shape[1]
        rep = Hq // Hkv
        q = (lambda x, *d: x.permute(*d))((x @ wq).reshape(B, Sq, Hq, Dh), 0, 2, 1, 3)
        k = (lambda x, n, axis: torch.repeat_interleave(x, n, dim=axis))(k_cache, rep, axis=1)
        v = (lambda x, n, axis: torch.repeat_interleave(x, n, dim=axis))(v_cache, rep, axis=1)
        scores = torch.einsum("bhqd,bhkd->bhqk", q, k) * (Dh ** -0.5)
        p = _softmax(scores, axis=-1)
        o = torch.einsum("bhqk,bhkd->bhqd", p, v)
        return (lambda x, *d: x.permute(*d))(o, 0, 2, 1, 3).reshape(B, Sq, Hq * Dh) @ wo

    def _B_ref(x, w1, b1, w2, b2):
        h = torch.einsum("bsd,df->bsf", x, w1) + b1
        zero = torch.zeros_like(h)
        r = torch.where(h > zero, h, zero)
        h = r * r
        out = torch.einsum("bsf,fd->bsd", h, w2) + b2
        return out

    x = A_x
    xn = _layernorm(x, axis=-1)
    return x + _A_ref(xn, A_k_cache, A_v_cache, A_wq, A_wo) + _B_ref(xn, B_w1, B_b1, B_w2, B_b2)
```

```python
import sys, argparse, struct

NAME = "parallel_sum__gqa_block_cached__dense_activation_squared_relu__decode"
KN = NAME + "_kernel"

WS_TICK = 0x000000
WS_EPOCH= 0x0F0000
WS_QP   = 0x100000
WS_P1   = 0x300000
WS_Y    = 0x400000
WS_YM   = 0x500000
WS_STAMP= 0x800000
WS_SIZE = 0x1000000
L_XN  = 0
L_QPL = 20480
L_HPL = 28672
L_QL  = 36864
L_HL  = 37376
L_CNT = 39424
L_SP  = 0
L_ST  = 8192
L_OL  = 12288
L_YL  = 20480
LDS_BYTES = 40960

LOG2E = 1.4426950408889634
OOB = "0x7f000000"

class Cfg:
    spin_max = 200000
    win = 8
    sleepg = 16
    stamps = False
C = Cfg()

class G:
    def __init__(s):
        s.o = []; s.nl = 0
    def __call__(s, t):
        for line in t.strip("\n").split("\n"):
            line = line.strip()
            s.o.append(line if line.endswith(":") else "    " + line)
    def label(s, base):
        s.nl += 1
        return f"L_{base}_{s.nl}"
    def stamp(s, k):
        if C.stamps: s(f"s_memrealtime s[{64+2*k}:{65+2*k}]")
    def text(s): return "\n".join(s.o) + "\n"

def f2u(x): return struct.unpack("<I", struct.pack("<f", x))[0]
def fx(x): return f"0x{f2u(x):08x}"

def bf16r(g, dst, src):
    g(f"v_cvt_pk_bf16_f32 v{dst}, v{src}, v{src}")
    g(f"v_and_b32 v{dst}, 0xffff0000, v{dst}")

def multi_xswap(g, regs, tmps, which, op="v_add_f32"):
    for v, t in zip(regs, tmps): g(f"v_mov_b32 v{t}, v{v}")
    g("s_nop 1")
    for v, t in zip(regs, tmps): g(f"v_permlane{which}_swap_b32 v{v}, v{t}")
    g("s_nop 1")
    for v, t in zip(regs, tmps): g(f"{op} v{v}, v{v}, v{t}")

DPPF = "row_mask:0xf bank_mask:0xf"
def row_allreduce(g, regs, op):
    for ctrl in ("row_ror:8", "row_half_mirror", "quad_perm:[3,2,1,0]", "quad_perm:[1,0,3,2]"):
        if len(regs) < 3: g("s_nop 1")
        for v in regs: g(f"{op}_dpp v{v}, v{v}, v{v} {ctrl} {DPPF}")

def srd(g, s, lo, size):
    g(f"s_mov_b32 s{s}, s{lo}\ns_mov_b32 s{s+1}, s{lo+1}\ns_mov_b32 s{s+2}, {size}\ns_mov_b32 s{s+3}, 0x20000")

def stamp_store(g, swave, ks, only_wave):
    l = g.label("st")
    g("s_waitcnt lgkmcnt(0)")
    g(f"s_cmp_eq_u32 {swave}, {only_wave}")
    g(f"s_cbranch_scc0 {l}")
    g("s_lshl_b32 s60, s2, 6")
    g(f"s_add_u32 s60, s60, {WS_STAMP}")
    g("s_add_u32 s62, s28, s60\ns_addc_u32 s63, s29, 0")
    g("s_mov_b64 exec, 1")
    g("v_mov_b32 v40, 0")
    for k in ks:
        g(f"v_mov_b32 v41, s{64+2*k}")
        g(f"global_store_dword v40, v41, s[62:63] offset:{4*k}")
        g("s_nop 1")
    g("s_waitcnt vmcnt(0)")
    g(f"{l}:")

def spin_tail(g, lp, dn, sleep):
    g("s_add_u32 s58, s58, 1")
    g(f"s_cbranch_vccz {dn}")
    g(f"s_cmp_lt_u32 s58, {C.spin_max}")
    g(f"s_cbranch_scc0 {dn}")
    g(f"s_sleep {sleep}")
    g(f"s_branch {lp}")
    g(f"{dn}:")

def poll_valid(g, loads, regs, tag, tmp=127, sleep=1):
    lp = g.label("poll"+tag); dn = g.label("pdone"+tag)
    g("s_mov_b32 s58, 0")
    g(f"{lp}:")
    loads()
    g("s_waitcnt vmcnt(0)")
    g(f"v_max_u32 v{tmp}, v{regs[0]}, v{regs[1]}")
    rest = regs[2:]
    while len(rest) >= 2:
        g(f"v_max3_u32 v{tmp}, v{tmp}, v{rest[0]}, v{rest[1]}"); rest = rest[2:]
    for r in rest: g(f"v_max_u32 v{tmp}, v{tmp}, v{r}")
    g(f"v_cmp_eq_u32 vcc, -1, v{tmp}")
    spin_tail(g, lp, dn, sleep)

def lds_arrive_wait(g, idx, n):
    lp = g.label("lw")
    g(f"v_mov_b32 v173, {L_CNT + 4*idx}")
    g("v_mov_b32 v174, 1")
    g("s_mov_b64 exec, 1")
    g("ds_add_u32 v173, v174")
    g(f"{lp}:")
    g("ds_read_b32 v174, v173")
    g("s_waitcnt lgkmcnt(0)")
    g("v_readfirstlane_b32 s59, v174")
    g(f"s_cmp_lt_u32 s59, {n}")
    g(f"s_cbranch_scc1 {lp}")
    g("s_mov_b64 exec, -1")

def diag_mfma(g, vAaddr, imm_bp, imm_j, nj, Ws, Ds, vA, masks, lds_base):
    raw = vA
    for j in range(nj):
        for bp in range(2):
            g(f"ds_read_b32 v{raw+2*j+bp}, v{vAaddr} offset:{lds_base + bp*imm_bp + j*imm_j}")
    op = vA + 2*nj
    n = 0
    for j in range(nj):
        for bp in range(2):
            g(f"s_waitcnt lgkmcnt({min(15, 2*nj-1-n)})")
            o = op + 4*(n % 2)
            for q in range(4): g(f"v_and_b32 v{o+q}, v{masks+q}, v{raw+2*j+bp}")
            g("s_nop 1")
            for W, D in zip(Ws, Ds):
                c = "0" if j == 0 else f"v[{D+4*bp}:{D+4*bp+3}]"
                g(f"v_mfma_f32_16x16x32_bf16 v[{D+4*bp}:{D+4*bp+3}], v[{o}:{o+3}], v[{W+4*j}:{W+4*j+3}], {c}")
            n += 1
    g("s_nop 7")

def streaming(g):
    TK = 64; LPT = 16; TB = TK*256; NT = 8192//TK; NW = 8
    vL16, vOff, vTk, vZero, vOne, vM, vL = 1, 2, 3, 4, 5, 6, 7
    vAcc = 8; vQ = 16; vS = 20; vU = 36; vK = 48; vV = 112
    g("s_and_b32 s34, s3, 1")
    g("s_lshl_b32 s35, s32, 1")
    g("s_add_u32 s35, s35, s34")
    g("s_lshl_b32 s52, s35, 5")
    g("s_add_u32 s52, s52, s30")
    g("s_lshr_b32 s53, s3, 1")
    g("s_lshl_b32 s54, s33, 1")
    g("s_add_u32 s53, s53, s54")
    g("s_lshl_b32 s54, s52, 21")
    g(f"v_lshlrev_b32 v{vL16}, 4, v1")
    g(f"s_mul_i32 s47, s53, {TB}")
    g(f"v_add_u32 v{vOff}, s47, v{vL16}")
    g("s_mov_b32 s40, 4096\ns_mov_b32 s41, 8192\ns_mov_b32 s42, 12288\ns_mov_b32 s43, 0xffff0000")
    g("s_mov_b32 s34, 0x200000\ns_mov_b32 s35, 0x20000\ns_mov_b32 s38, 0x200000\ns_mov_b32 s39, 0x20000")
    g("s_lshl_b32 s55, s52, 8")
    lz = g.label("z")
    g("s_cmp_lg_u32 s3, 0")
    g(f"s_cbranch_scc1 {lz}")
    g(f"v_mov_b32 v44, {L_CNT}")
    for k in range(4): g(f"v_mov_b32 v{48+k}, 0")
    g("ds_write_b128 v44, v[48:51]")
    g("ds_write_b128 v44, v[48:51] offset:16")
    g(f"{lz}:")
    g("s_waitcnt lgkmcnt(0)")
    g("s_add_u32 s32, s6, s54\ns_addc_u32 s33, s7, 0")
    g("s_add_u32 s36, s8, s54\ns_addc_u32 s37, s9, 0")
    g("s_add_u32 s44, s28, s55\ns_addc_u32 s45, s29, 0")
    if WS_TICK: g(f"s_add_u32 s44, s44, {WS_TICK}\ns_addc_u32 s45, s45, 0")
    g("s_barrier")
    soffs = ["0", "s40", "s41", "s42"]
    def kload(j): g(f"buffer_load_dwordx4 v[{vK+4*j}:{vK+4*j+3}], v{vOff}, s[32:35], {soffs[j//4]} offen offset:{(j%4)*1024} nt")
    def vload(j): g(f"buffer_load_dwordx4 v[{vV+4*j}:{vV+4*j+3}], v{vOff}, s[36:39], {soffs[j//4]} offen offset:{(j%4)*1024} nt")
    for n in range(2*LPT):
        if n >= C.win: g(f"s_waitcnt vmcnt({C.win-1})")
        if n < LPT: kload(n)
        else: vload(n-LPT)
    g.stamp(1)
    g(f"v_mov_b32 v{vZero}, 0\nv_mov_b32 v{vOne}, 1\nv_mov_b32 v{vM}, 0xff800000\nv_mov_b32 v{vL}, 0")
    for k in range(8): g(f"v_mov_b32 v{vAcc+k}, 0")
    g("s_mov_b32 s48, 0xcccccccc\ns_mov_b32 s49, 0xcccccccc\ns_mov_b32 s50, 0xaaaaaaaa\ns_mov_b32 s51, 0xaaaaaaaa")
    g("s_add_u32 s46, s53, 8")
    g(f"v_and_b32 v44, 0xf0, v{vL16}")
    g("s_and_b32 s54, s3, 1")
    g("s_lshl_b32 s54, s54, 8")
    g("v_add_u32 v44, s54, v44")
    g("s_barrier")
    g(f"ds_read_b128 v[{vQ}:{vQ+3}], v44 offset:{L_QL}")
    g("s_waitcnt lgkmcnt(0)")
    g.stamp(2)
    g("s_branch L_entry")
    g("L_top:")
    g(f"s_waitcnt vmcnt({2*LPT})")
    g(f"v_readfirstlane_b32 s46, v{vTk}")
    g(f"s_add_u32 s46, s46, {2*NW}")
    g("L_entry:")
    g("s_mov_b64 exec, 1")
    g(f"global_atomic_add v{vTk}, v{vZero}, v{vOne}, s[44:45] sc0 sc1")
    g("s_mov_b64 exec, -1")
    g(f"s_mul_i32 s47, s46, {TB}")
    g(f"s_cmp_ge_u32 s46, {NT}")
    g("s_cselect_b32 s47, 0x7fff0000, s47")
    g(f"v_add_u32 v{vOff}, s47, v{vL16}")
    for j in range(LPT):
        g(f"s_waitcnt vmcnt({2*LPT})")
        k = vK + 4*j
        g(f"v_dot2_f32_bf16 v{vS+j}, v{k}, v{vQ}, 0")
        for t in range(1, 4): g(f"v_dot2_f32_bf16 v{vS+j}, v{k+t}, v{vQ+t}, v{vS+j}")
        kload(j)
    for j in range(8):
        g(f"v_add_f32_dpp v{vS+j}, v{vS+j}, v{vS+j} row_ror:8 row_mask:0xf bank_mask:0x3")
        g(f"v_add_f32_dpp v{vS+j}, v{vS+j+8}, v{vS+j+8} row_ror:8 row_mask:0xf bank_mask:0xc")
    for j in range(4):
        g(f"v_add_f32_dpp v{vS+j}, v{vS+j}, v{vS+j} row_half_mirror row_mask:0xf bank_mask:0x5")
        g(f"v_add_f32_dpp v{vS+j}, v{vS+j+4}, v{vS+j+4} row_half_mirror row_mask:0xf bank_mask:0xa")
    u0, w0, u1, w1 = vU, vU+1, vU+2, vU+3
    g(f"v_add_f32_dpp v{u0}, v{vS+0}, v{vS+0} quad_perm:[3,2,1,0] {DPPF}")
    g(f"v_add_f32_dpp v{w0}, v{vS+2}, v{vS+2} quad_perm:[3,2,1,0] {DPPF}")
    g(f"v_add_f32_dpp v{u1}, v{vS+1}, v{vS+1} quad_perm:[3,2,1,0] {DPPF}")
    g(f"v_add_f32_dpp v{w1}, v{vS+3}, v{vS+3} quad_perm:[3,2,1,0] {DPPF}")
    g(f"v_cndmask_b32 v{vS+0}, v{u0}, v{w0}, s[48:49]")
    g(f"v_cndmask_b32 v{vS+1}, v{u1}, v{w1}, s[48:49]")
    g("s_nop 1")
    g(f"v_add_f32_dpp v{u0}, v{vS+0}, v{vS+0} quad_perm:[1,0,3,2] {DPPF}")
    g(f"v_add_f32_dpp v{w0}, v{vS+1}, v{vS+1} quad_perm:[1,0,3,2] {DPPF}")
    sc = vS
    g(f"v_cndmask_b32 v{sc}, v{u0}, v{w0}, s[50:51]")
    g(f"v_cvt_pk_bf16_f32 v{sc}, v{sc}, v{sc}")
    g(f"v_and_b32 v{sc}, s43, v{sc}")
    g(f"v_mul_f32 v{sc}, {fx(128**-0.5)}, v{sc}")
    g(f"v_cvt_pk_bf16_f32 v{sc}, v{sc}, v{sc}")
    g(f"v_and_b32 v{sc}, s43, v{sc}")
    mx = vS+1; al = vS+2; vP = vS+3
    g(f"v_max_f32 v{mx}, v{sc}, v{vM}")
    for ctrl in ("row_ror:8", "row_half_mirror", "quad_perm:[3,2,1,0]", "quad_perm:[1,0,3,2]"):
        g("s_nop 1")
        g(f"v_max_f32_dpp v{mx}, v{mx}, v{mx} {ctrl} {DPPF}")
    g(f"v_sub_f32 v{al}, v{vM}, v{mx}")
    g(f"v_sub_f32 v{vP}, v{sc}, v{mx}")
    g(f"v_mul_f32 v{al}, {fx(LOG2E)}, v{al}")
    g(f"v_mul_f32 v{vP}, {fx(LOG2E)}, v{vP}")
    g(f"v_exp_f32 v{al}, v{al}")
    g(f"v_exp_f32 v{vP}, v{vP}")
    g(f"v_mov_b32 v{vM}, v{mx}")
    g(f"v_fma_f32 v{vL}, v{vL}, v{al}, v{vP}")
    for k in range(8): g(f"v_mul_f32 v{vAcc+k}, v{vAcc+k}, v{al}")
    for j in range(LPT):
        g(f"s_waitcnt vmcnt({2*LPT})")
        v = vV + 4*j
        for t in range(4):
            g(f"v_lshlrev_b32 v{vU+2*t}, 16, v{v+t}")
            g(f"v_and_b32 v{vU+2*t+1}, s43, v{v+t}")
        vload(j)
        for k in range(8):
            g(f"v_fmac_f32_dpp v{vAcc+k}, v{vP}, v{vU+k} row_newbcast:{j} {DPPF}")
    g(f"s_cmp_lt_u32 s46, {NT}")
    g("s_cbranch_scc1 L_top")
    g.stamp(3)
    g(f"v_lshlrev_b32 v45, 1, v{vL16}")
    g("s_lshl_b32 s54, s3, 11")
    g("v_add_u32 v45, s54, v45")
    g(f"ds_write_b128 v45, v[{vAcc}:{vAcc+3}] offset:{L_SP}")
    g(f"ds_write_b128 v45, v[{vAcc+4}:{vAcc+7}] offset:{L_SP+16}")
    row_allreduce(g, [vL], "v_add_f32")
    g(f"v_lshrrev_b32 v46, 8, v{vL16}")
    g("v_lshlrev_b32 v46, 3, v46")
    g("s_lshl_b32 s54, s3, 5")
    g("v_add_u32 v46, s54, v46")
    g("s_mov_b32 exec_lo, 0x00010001\ns_mov_b32 exec_hi, 0x00010001")
    g(f"ds_write_b64 v46, v[{vM}:{vM+1}] offset:{L_ST}")
    g("s_mov_b64 exec, -1")
    g("s_waitcnt lgkmcnt(0)")
    g("s_barrier")
    if C.stamps: stamp_store(g, "s3", range(0, 4), only_wave=0)
    g("s_endpgm")

def aux(g):
    g("s_sub_u32 s34, s3, 4")
    vLane, vC, vG, vHalf = 1, 2, 3, 12
    MK = 104; TAG = 170
    g(f"v_and_b32 v{vC}, 15, v{vLane}")
    g(f"v_lshrrev_b32 v{vG}, 4, v{vLane}")
    g(f"v_lshlrev_b32 v11, 4, v{vC}")
    g("s_mul_i32 s52, s34, 1280")
    g("s_mul_i32 s53, s31, 160")
    g("s_add_u32 s53, s53, s52")
    g(f"v_cmp_gt_u32 vcc, 40, v{vLane}")
    g(f"v_lshlrev_b32 v9, 5, v{vLane}")
    g("v_add_u32 v9, s52, v9")
    g(f"v_lshlrev_b32 v15, 2, v{vLane}")
    g("v_add_u32 v15, s53, v15")
    g(f"v_mov_b32 v13, {OOB}")
    g("v_cndmask_b32 v9, v13, v9, vcc")
    g("v_cndmask_b32 v15, v13, v15, vcc")
    g(f"v_lshlrev_b32 v10, 13, v{vG}")
    g("v_add_u32 v10, v10, v11")
    g(f"v_cmp_gt_u32 vcc, 7, v{vC}")
    g(f"v_mul_u32_u24 v14, 3456, v{vG}")
    g("v_add_u32 v14, v14, v11")
    g("v_cndmask_b32 v13, v13, v14, vcc")
    g("s_mul_i32 s35, s31, 80")
    g("s_mul_i32 s52, s34, 20")
    g("s_add_u32 s35, s35, s52")
    g("s_lshl_b32 s52, s35, 13")
    g("s_lshl_b32 s53, s30, 8")
    g("s_add_u32 s52, s52, s53")
    g("s_mul_i32 s54, s35, 3456")
    g("s_mul_i32 s55, s30, 108")
    g("s_add_u32 s54, s54, s55")
    g("s_mov_b32 s42, 5120\ns_mov_b32 s43, 0x20000\ns_mov_b32 s46, 5242880\ns_mov_b32 s47, 0x20000")
    g("s_mov_b32 s50, 2211840\ns_mov_b32 s51, 0x20000")
    g("s_waitcnt lgkmcnt(0)")
    g("s_mov_b32 s40, s4\ns_mov_b32 s41, s5")
    X = 16
    g(f"buffer_load_dwordx4 v[{X}:{X+3}], v9, s[40:43], 0 offen")
    g(f"buffer_load_dwordx4 v[{X+4}:{X+7}], v9, s[40:43], 0 offen offset:16")
    g(f"buffer_load_dword v{X+8}, v15, s[40:43], 0 offen")
    g("s_mov_b32 s44, s10\ns_mov_b32 s45, s11")
    WQ = 36; W1 = 56; B1R = 76
    for j in range(5):
        g(f"buffer_load_dwordx4 v[{WQ+4*j}:{WQ+4*j+3}], v10, s[44:47], s52 offen nt")
        if j < 4: g("s_add_u32 s52, s52, 32768")
    g("s_mov_b32 s48, s16\ns_mov_b32 s49, s17")
    for j in range(5):
        g(f"buffer_load_dwordx4 v[{W1+4*j}:{W1+4*j+3}], v13, s[48:51], s54 offen nt")
        if j < 4: g("s_add_u32 s54, s54, 13824")
    g(f"s_load_dword s96, s[28:29], {WS_EPOCH}")
    srd(g, 36, 28, WS_SIZE)
    g(f"v_lshlrev_b32 v8, 4, v{vLane}")
    for k in range(4): g(f"v_mov_b32 v{4+k}, -1")
    g("s_mov_b32 s97, 255\ns_mov_b32 s98, 255\ns_mov_b32 s99, 0\ns_mov_b32 s62, 255")
    g("s_sub_u32 s52, s31, 1")
    g("s_cmp_lt_u32 s31, 3\ns_cselect_b32 s97, s31, s97")
    g("s_cmp_eq_u32 s31, 4\ns_cselect_b32 s97, s52, s97")
    g("s_cmp_eq_u32 s31, 5\ns_cselect_b32 s97, s52, s97")
    g("s_mul_i32 s52, s30, 3")
    g("s_cmp_eq_u32 s31, 3\ns_cselect_b32 s98, 0, s98\ns_cselect_b32 s99, 2, s99\ns_cselect_b32 s62, s52, s62")
    g("s_add_u32 s52, s52, 1")
    g("s_cmp_eq_u32 s31, 6\ns_cselect_b32 s98, 2, s98\ns_cselect_b32 s99, 2, s99\ns_cselect_b32 s62, s52, s62")
    g("s_add_u32 s52, s52, 1")
    g("s_cmp_eq_u32 s31, 7\ns_cselect_b32 s98, 4, s98\ns_cselect_b32 s99, 1, s99\ns_cselect_b32 s62, s52, s62")
    g("s_lshl_b32 s52, s30, 2")
    g("s_lshl_b32 s53, s32, 1")
    g("s_add_u32 s52, s52, s53")
    g("s_lshl_b32 s52, s52, 2")
    g("s_add_u32 s52, s52, s33")
    g("s_lshl_b32 s52, s52, 10")
    g(f"s_add_u32 s57, s52, {WS_P1}")
    g("s_mul_i32 s56, s30, 5")
    g("s_lshr_b32 s53, s34, 1")
    g("s_add_u32 s52, s56, s98")
    g("s_add_u32 s52, s52, s53")
    g("s_lshl_b32 s52, s52, 11")
    g("s_and_b32 s54, s34, 1")
    g("s_lshl_b32 s54, s54, 10")
    g("s_add_u32 s52, s52, s54")
    g(f"s_add_u32 s52, s52, {WS_YM}")
    g("s_cmp_ge_u32 s53, s99")
    g(f"s_cselect_b32 s52, {OOB}, s52")
    g("v_add_u32 v78, s52, v8")
    g("buffer_store_dwordx4 v[4:7], v78, s[36:39], 0 offen sc1")
    g("s_add_u32 s52, s56, s97")
    g("s_lshl_b32 s52, s52, 11")
    g(f"s_add_u32 s52, s52, {WS_Y}")
    g("s_cmp_ge_u32 s97, 5")
    g(f"s_cselect_b32 s52, {OOB}, s52")
    g("s_add_u32 s53, s52, 1024")
    g("s_add_u32 s54, s57, 4096")
    g("s_cmp_eq_u32 s34, 0")
    g("s_cselect_b32 s52, s57, s52")
    g("s_cselect_b32 s53, s54, s53")
    g("s_cmp_ge_u32 s34, 2")
    g(f"s_cselect_b32 s52, {OOB}, s52")
    g(f"s_cselect_b32 s53, {OOB}, s53")
    g("v_add_u32 v78, s52, v8")
    g("v_add_u32 v79, s53, v8")
    g("s_lshl_b32 s54, s32, 6")
    g("s_add_u32 s54, s54, s30")
    g("s_lshl_b32 s54, s54, 8")
    if WS_TICK: g(f"s_add_u32 s54, s54, {WS_TICK}")
    g("s_cmp_lg_u32 s33, 0")
    g(f"s_cselect_b32 s54, {OOB}, s54")
    g("s_cmp_lg_u32 s34, 2")
    g(f"s_cselect_b32 s54, {OOB}, s54")
    g(f"v_lshlrev_b32 v171, 13, v{vLane}")
    g(f"v_cmp_gt_u32 vcc, 2, v{vLane}")
    g(f"v_mov_b32 v172, {OOB}")
    g("v_add_u32 v171, s54, v171")
    g("v_cndmask_b32 v171, v172, v171, vcc")
    g("v_mov_b32 v172, 0")
    g("buffer_store_dwordx4 v[4:7], v78, s[36:39], 0 offen sc1")
    g("buffer_store_dwordx4 v[4:7], v79, s[36:39], 0 offen sc1")
    g("buffer_store_dword v172, v171, s[36:39], 0 offen sc1")
    NCLR = 4
    g("s_barrier")
    g(f"v_and_b32 v100, 7, v{vLane}")
    g("v_lshrrev_b32 v101, 1, v100")
    g("v_and_b32 v100, 1, v100")
    g("v_lshlrev_b32 v100, 4, v100")
    g("v_mov_b32 v102, 0xffff")
    g("v_lshlrev_b32 v102, v100, v102")
    for q in range(4):
        g(f"v_cmp_eq_u32 vcc, {q}, v101")
        g("s_nop 1")
        g(f"v_cndmask_b32 v{MK+q}, 0, v102, vcc")
    g(f"v_lshrrev_b32 v{vHalf}, 3, v{vLane}")
    g(f"v_and_b32 v{vHalf}, 1, v{vHalf}")
    g(f"v_mul_u32_u24 v78, 320, v{vHalf}")
    g("s_mul_i32 s52, s34, 20")
    g(f"v_add_u32 v79, s52, v{vG}")
    g("v_lshlrev_b32 v79, 2, v79")
    g("v_add_u32 v78, v78, v79")
    g("s_mul_i32 s52, s34, 320")
    g(f"v_lshlrev_b32 v79, 3, v{vLane}")
    g("v_add_u32 v79, s52, v79")
    g("v_mov_b32 v90, 0x3f803f80")
    g("v_mov_b32 v91, 0\nv_mov_b32 v92, 0\nv_mov_b32 v93, 0\nv_mov_b32 v94, 0")
    g(f"v_lshrrev_b32 v100, 1, v{vG}")
    g("v_lshlrev_b32 v100, 9, v100")
    g(f"v_lshlrev_b32 v101, 5, v{vC}")
    g("v_add_u32 v100, v100, v101")
    g(f"v_and_b32 v101, 1, v{vG}")
    g("v_lshlrev_b32 v101, 4, v101")
    g("v_add_u32 v103, v100, v101")
    g(f"v_mul_u32_u24 v14, 1280, v{vG}")
    g("v_add_u32 v14, v14, v11")
    g(f"s_waitcnt vmcnt({10+NCLR})")
    g.stamp(4)
    for t in range(0, 8, 2):
        g(f"v_dot2c_f32_bf16 v91, v{X+t}, v90")
        g(f"v_dot2c_f32_bf16 v92, v{X+t}, v{X+t}")
        g(f"v_dot2c_f32_bf16 v93, v{X+t+1}, v90")
        g(f"v_dot2c_f32_bf16 v94, v{X+t+1}, v{X+t+1}")
    g(f"v_lshlrev_b32 v95, 16, v{X+8}")
    g(f"v_and_b32 v96, 0xffff0000, v{X+8}")
    g("s_nop 0")
    g("v_add_f32 v91, v91, v93")
    g("v_add_f32 v92, v92, v94")
    row_allreduce(g, [91, 92], "v_add_f32")
    multi_xswap(g, [91, 92], [93, 94], 16)
    multi_xswap(g, [91, 92], [93, 94], 32)
    g(f"v_mul_f32 v91, {fx(1/640)}, v91")
    g(f"v_mul_f32 v92, {fx(1/640)}, v92")
    g("v_fma_f32 v92, -v91, v91, v92")
    g("v_max_f32 v92, 0, v92")
    g("v_cvt_pk_bf16_f32 v91, v91, v92")
    g("v_and_b32 v92, 0xffff0000, v91")
    g("v_lshlrev_b32 v91, 16, v91")
    g(f"v_add_f32 v92, {fx(1e-5)}, v92")
    g("v_sub_f32 v95, v95, v91")
    g("v_sub_f32 v96, v96, v91")
    bf16r(g, 92, 92)
    g("v_cvt_pk_bf16_f32 v95, v95, v96")
    g("v_sqrt_f32 v92, v92")
    g("v_and_b32 v96, 0xffff0000, v95")
    g("v_lshlrev_b32 v95, 16, v95")
    bf16r(g, 92, 92)
    g("v_rcp_f32 v93, v92")
    g("s_nop 0")
    g("v_mul_f32 v97, v95, v93")
    g("v_mul_f32 v98, v96, v93")
    g("v_fma_f32 v99, -v97, v92, v95")
    g("v_fma_f32 v100, -v98, v92, v96")
    g("v_fma_f32 v97, v99, v93, v97")
    g("v_fma_f32 v98, v100, v93, v98")
    g("v_cvt_pk_bf16_f32 v99, v98, v98")
    g("v_cvt_pk_bf16_f32 v98, v97, v97")
    g("s_mov_b32 exec_hi, 0xff")
    g(f"ds_write_b64 v79, v[98:99] offset:{L_XN}")
    g("s_mov_b64 exec, -1")
    g("s_waitcnt lgkmcnt(0)")
    lds_arrive_wait(g, 0, 4)
    g(f"s_waitcnt vmcnt({NCLR})")
    g.stamp(14)
    DQ = 148; DH = 156
    diag_mfma(g, 78, 640, 16, 5, [WQ, W1], [DQ, DH], 108, MK, L_XN)
    g("s_lshl_b32 s52, s34, 11")
    g("v_add_u32 v100, s52, v103")
    g(f"ds_write_b128 v100, v[{DQ}:{DQ+3}] offset:{L_QPL}")
    g(f"ds_write_b128 v100, v[{DQ+4}:{DQ+7}] offset:{L_QPL+1024}")
    g(f"ds_write_b128 v100, v[{DH}:{DH+3}] offset:{L_HPL}")
    g(f"ds_write_b128 v100, v[{DH+4}:{DH+7}] offset:{L_HPL+1024}")
    g("s_waitcnt vmcnt(0) lgkmcnt(0)")
    g("s_add_u32 s96, s96, 1")
    g(f"v_mov_b32 v{TAG}, s96")
    lds_arrive_wait(g, 1, 4)
    g.stamp(5)
    g(f"v_lshlrev_b32 v15, 3, v{vLane}")
    g("s_lshl_b32 s52, s34, 9")
    g("v_add_u32 v15, s52, v15")
    for a2 in range(4):
        g(f"ds_read_b64 v[{16+2*a2}:{17+2*a2}], v15 offset:{L_QPL + a2*2048}")
    for a2 in range(4):
        g(f"ds_read_b64 v[{28+2*a2}:{29+2*a2}], v15 offset:{L_HPL + a2*2048}")
    g("s_lshl_b32 s52, s2, 13")
    g("s_lshl_b32 s53, s34, 10")
    g("s_add_u32 s52, s52, s53")
    g(f"s_add_u32 s52, s52, {WS_QP}")
    def pubsum(R):
        for k in range(2): g(f"v_add_f32 v{R+k}, v{R+k}, v{R+2+k}")
        for k in range(2): g(f"v_add_f32 v{R+4+k}, v{R+4+k}, v{R+6+k}")
        g(f"v_add_f32 v{R+8}, v{R}, v{R+4}")
        g(f"v_add_f32 v{R+10}, v{R+1}, v{R+5}")
        g(f"v_mov_b32 v{R+9}, v{TAG}")
        g(f"v_mov_b32 v{R+11}, v{TAG}")
    g("s_waitcnt lgkmcnt(4)")
    pubsum(16)
    g("buffer_store_dwordx4 v[24:27], v8, s[36:39], s52 offen sc1")
    g("s_waitcnt lgkmcnt(0)")
    pubsum(28)
    g("s_add_u32 s52, s52, 4096")
    g("s_mov_b64 exec, 0x0fffffff")
    g("buffer_store_dwordx4 v[36:39], v8, s[36:39], s52 offen sc1")
    g("s_mov_b64 exec, -1")
    g.stamp(6)
    def gather(sbase, GR, tag, pre_sleep=0):
        lp = g.label("pg"+tag); dn = g.label("pgd"+tag)
        g("s_mov_b32 s58, 0")
        if pre_sleep: g(f"s_sleep {pre_sleep}")
        g(f"{lp}:")
        g(f"s_mov_b32 s53, {sbase}")
        for t in range(8):
            g(f"buffer_load_dwordx4 v[{GR+4*t}:{GR+4*t+3}], v8, s[36:39], s53 offen sc1")
            if t < 7: g("s_add_u32 s53, s53, 8192")
        g("s_waitcnt vmcnt(0)")
        g(f"v_xor_b32 v{GR+32}, v{GR+1}, v{TAG}")
        for t in range(8):
            for k in (1, 3):
                if t == 0 and k == 1: continue
                g(f"v_xor_b32 v{GR+33}, v{GR+4*t+k}, v{TAG}")
                g(f"v_or_b32 v{GR+32}, v{GR+32}, v{GR+33}")
        g(f"v_cmp_ne_u32 vcc, 0, v{GR+32}")
        spin_tail(g, lp, dn, 2)
        for k in (0, 2):
            for t in range(0, 8, 2): g(f"v_add_f32 v{GR+4*t+k}, v{GR+4*t+k}, v{GR+4*(t+1)+k}")
            g(f"v_add_f32 v{GR+k}, v{GR+k}, v{GR+8+k}")
            g(f"v_add_f32 v{GR+16+k}, v{GR+16+k}, v{GR+24+k}")
            g(f"v_add_f32 v{GR+k}, v{GR+k}, v{GR+16+k}")
    GQ = 112
    l_noq = g.label("noq")
    g("s_cmp_ge_u32 s34, 2")
    g(f"s_cbranch_scc1 {l_noq}")
    g("s_lshl_b32 s52, s30, 16")
    g("s_lshl_b32 s53, s32, 1")
    g("s_add_u32 s53, s53, s34")
    g("s_lshl_b32 s53, s53, 10")
    g("s_add_u32 s52, s52, s53")
    g(f"s_add_u32 s52, s52, {WS_QP}")
    gather("s52", GQ, "q", C.sleepg)
    g(f"v_cvt_pk_bf16_f32 v{GQ}, v{GQ}, v{GQ+2}")
    g(f"v_lshlrev_b32 v17, 2, v{vLane}")
    g("s_lshl_b32 s52, s34, 8")
    g("v_add_u32 v17, s52, v17")
    g(f"ds_write_b32 v17, v{GQ} offset:{L_QL}")
    g("s_waitcnt lgkmcnt(0)")
    g(f"{l_noq}:")
    g.stamp(7)
    g("s_barrier")
    g.stamp(8)
    WB = 16; SC = 48; DD = 80
    l_wo = g.label("wo"); l_b3 = g.label("b3")
    g("s_cmp_eq_u32 s99, 0")
    g(f"s_cbranch_scc1 {l_wo}")
    srd(g, 48, 18, 3456)
    g("s_mul_i32 s52, s30, 108")
    g(f"v_lshlrev_b32 v15, 2, v{vLane}")
    g("v_add_u32 v15, s52, v15")
    g(f"buffer_load_dword v{B1R}, v15, s[48:51], 0 offen")
    srd(g, 48, 20, 2211840)
    g("s_mul_i32 s52, s30, 54")
    g("s_lshl_b32 s53, s34, 4")
    g("s_add_u32 s52, s52, s53")
    g("s_mul_i32 s52, s52, 1280")
    g("s_lshl_b32 s54, s98, 8")
    g("s_add_u32 s52, s52, s54")
    g(f"v_add_u32 v77, s53, v{vG}")
    for jj in range(4):
        g(f"v_add_u32 v{88+jj}, s52, v14")
        g(f"v_cmp_gt_u32 vcc, {54-4*jj}, v77")
        g(f"v_mov_b32 v92, {OOB}")
        g("s_add_u32 s52, s52, 5120")
        g(f"v_cndmask_b32 v{88+jj}, v92, v{88+jj}, vcc")
    for jj in range(4):
        g(f"buffer_load_dwordx4 v[{WB+4*jj}:{WB+4*jj+3}], v{88+jj}, s[48:51], 0 offen nt")
    l_u1 = g.label("u1")
    g("s_cmp_lt_u32 s99, 2")
    g(f"s_cbranch_scc1 {l_u1}")
    for jj in range(4):
        g(f"buffer_load_dwordx4 v[{WB+16+4*jj}:{WB+16+4*jj+3}], v{88+jj}, s[48:51], 0 offen offset:256 nt")
    g(f"{l_u1}:")
    g("s_lshl_b32 s52, s30, 16")
    g("s_lshl_b32 s53, s34, 10")
    g("s_add_u32 s52, s52, s53")
    g(f"s_add_u32 s52, s52, {WS_QP+4096}")
    g("s_mov_b64 exec, 0x0fffffff")
    gather("s52", GQ, "h")
    g("s_mov_b64 exec, -1")
    GH = [GQ, GQ+2]
    g(f"v_lshlrev_b32 v52, 16, v{B1R}")
    g(f"v_and_b32 v53, 0xffff0000, v{B1R}")
    for k in range(2): bf16r(g, GH[k], GH[k])
    for k in range(2): g(f"v_add_f32 v{GH[k]}, v{GH[k]}, v{52+k}")
    for k in range(2): bf16r(g, GH[k], GH[k])
    for k in range(2): g(f"v_max_f32 v{GH[k]}, 0, v{GH[k]}")
    for k in range(2): g(f"v_mul_f32 v{GH[k]}, v{GH[k]}, v{GH[k]}")
    g(f"v_cvt_pk_bf16_f32 v54, v{GH[0]}, v{GH[0]}")
    g(f"v_cvt_pk_bf16_f32 v55, v{GH[1]}, v{GH[1]}")
    g(f"v_cmp_gt_u32 vcc, 27, v{vLane}")
    g("s_nop 1")
    g("v_cndmask_b32 v54, 0, v54, vcc")
    g("v_cndmask_b32 v55, 0, v55, vcc")
    g(f"v_lshlrev_b32 v101, 3, v{vLane}")
    g("s_lshl_b32 s52, s34, 8")
    g("v_add_u32 v101, s52, v101")
    g("s_mov_b32 exec_hi, 0")
    g(f"ds_write_b64 v101, v[54:55] offset:{L_HL}")
    g("s_mov_b64 exec, -1")
    g("s_waitcnt lgkmcnt(0)")
    lds_arrive_wait(g, 2, 4)
    g(f"v_lshlrev_b32 v78, 8, v{vHalf}")
    g("v_lshlrev_b32 v79, 2, v77")
    g("v_add_u32 v78, v78, v79")
    g("s_waitcnt vmcnt(0)")
    DD2 = 92
    diag_mfma(g, 78, 512, 16, 4, [WB, WB+16], [DD, DD2], SC, MK, L_HL)
    g("s_lshl_b32 s52, s34, 11")
    g("v_add_u32 v100, s52, v103")
    g(f"ds_write_b128 v100, v[{DD}:{DD+3}] offset:{L_QPL}")
    g(f"ds_write_b128 v100, v[{DD+4}:{DD+7}] offset:{L_QPL+1024}")
    g(f"ds_write_b128 v100, v[{DD2}:{DD2+3}] offset:{L_HPL}")
    g(f"ds_write_b128 v100, v[{DD2+4}:{DD2+7}] offset:{L_HPL+1024}")
    g("s_waitcnt lgkmcnt(0)")
    lds_arrive_wait(g, 3, 4)
    g(f"v_and_b32 v109, 31, v{vLane}")
    g(f"v_lshrrev_b32 v108, 5, v{vLane}")
    g(f"v_mul_u32_u24 v110, {L_HPL-L_QPL}, v108")
    g("v_lshlrev_b32 v111, 4, v109")
    g("s_lshl_b32 s52, s34, 9")
    g("v_add_u32 v111, s52, v111")
    g("v_add_u32 v110, v110, v111")
    for a2 in range(4):
        g(f"ds_read_b128 v[{112+4*a2}:{112+4*a2+3}], v110 offset:{L_QPL + a2*2048}")
    g("s_add_u32 s52, s56, s98")
    g("s_lshl_b32 s52, s52, 11")
    g(f"s_add_u32 s52, s52, {WS_YM}")
    g("v_lshlrev_b32 v110, 11, v108")
    g("v_add_u32 v110, v110, v111")
    g("s_waitcnt lgkmcnt(0)")
    for k in range(4): g(f"v_add_f32 v{112+k}, v{112+k}, v{116+k}")
    for k in range(4): g(f"v_add_f32 v{120+k}, v{120+k}, v{124+k}")
    for k in range(4): g(f"v_add_f32 v{112+k}, v{112+k}, v{120+k}")
    g("s_cmp_lt_u32 s99, 2")
    g("s_cselect_b32 exec_hi, 0, -1")
    g("buffer_store_dwordx4 v[112:115], v110, s[36:39], s52 offen sc1")
    g("s_mov_b64 exec, -1")
    g("s_cmp_ge_u32 s62, 80")
    g(f"s_cbranch_scc1 {l_b3}")
    g("s_cmp_lg_u32 s34, 0")
    g(f"s_cbranch_scc1 {l_b3}")
    g("s_mul_i32 s52, s62, 205")
    g("s_lshr_b32 s52, s52, 12")
    g("s_mul_i32 s53, s52, 20")
    g("s_sub_u32 s53, s62, s53")
    g("s_lshr_b32 s54, s53, 2")
    g("s_and_b32 s53, s53, 3")
    g("s_lshl_b32 s55, s54, 11")
    g("s_lshl_b32 s63, s52, 9")
    g("s_add_u32 s55, s55, s63")
    g("s_lshl_b32 s63, s53, 7")
    g("s_add_u32 s55, s55, s63")
    g("s_mul_i32 s63, s52, 640")
    g("s_lshl_b32 s54, s54, 7")
    g("s_lshl_b32 s53, s53, 5")
    g("s_add_u32 s54, s54, s53")
    g("s_add_u32 s63, s63, s54")
    g("s_lshl_b32 s63, s63, 1")
    g("s_lshl_b32 s54, s54, 1")
    lp = g.label("pollall"); dn = g.label("pollall_done")
    g(f"v_lshlrev_b32 v16, 13, v{vLane}")
    g("s_mov_b32 s58, 0")
    g(f"{lp}:")
    g(f"s_mov_b32 s59, {WS_QP}")
    for t in range(4):
        g(f"buffer_load_dwordx2 v[{18+2*t}:{19+2*t}], v16, s[36:39], s59 offen sc1")
        if t < 3: g(f"s_add_u32 s59, s59, {64*8192}")
    g("s_waitcnt vmcnt(0)")
    g(f"v_xor_b32 v26, v19, v{TAG}")
    for t in range(1, 4):
        g(f"v_xor_b32 v27, v{19+2*t}, v{TAG}")
        g("v_or_b32 v26, v26, v27")
    g("v_cmp_ne_u32 vcc, 0, v26")
    spin_tail(g, lp, dn, 8)
    g(f"v_lshrrev_b32 v88, 3, v{vLane}")
    g(f"v_and_b32 v89, 7, v{vLane}")
    g("v_lshlrev_b32 v90, 4, v89")
    g("v_lshlrev_b32 v91, 3, v89")
    srd(g, 48, 22, 1280)
    g("v_add_u32 v92, s54, v91")
    g("buffer_load_dwordx2 v[94:95], v92, s[48:51], 0 offen")
    g("v_add_u32 v92, s63, v91")
    g("buffer_load_dwordx2 v[96:97], v92, s[40:43], 0 offen")
    g("v_mul_u32_u24 v93, 10240, v88")
    g("v_add_u32 v93, v93, v90")
    YR = 16
    def recloads(base):
        def f():
            g(f"s_add_u32 s52, s55, {base}")
            for t in range(4):
                g(f"buffer_load_dwordx4 v[{YR+4*t}:{YR+4*t+3}], v93, s[36:39], s52 offen sc1")
                if t < 3: g("s_add_u32 s52, s52, 81920")
        return f
    def red8(R, T):
        for t in range(1, 4):
            for k in range(4): g(f"v_add_f32 v{R+k}, v{R+k}, v{R+4*t+k}")
        g("s_nop 1")
        for k in range(4): g(f"v_add_f32_dpp v{R+k}, v{R+k}, v{R+k} row_ror:8 {DPPF}")
        multi_xswap(g, [R+k for k in range(4)], [T+k for k in range(4)], 16)
        multi_xswap(g, [R+k for k in range(4)], [T+k for k in range(4)], 32)
    poll_valid(g, recloads(WS_YM), list(range(YR, YR+16)), "ym", sleep=8)
    red8(YR, YR+4)
    g("v_lshlrev_b32 v80, 16, v96\nv_and_b32 v81, 0xffff0000, v96\nv_lshlrev_b32 v82, 16, v97\nv_and_b32 v83, 0xffff0000, v97")
    g("v_lshlrev_b32 v20, 16, v94\nv_and_b32 v21, 0xffff0000, v94\nv_lshlrev_b32 v22, 16, v95\nv_and_b32 v23, 0xffff0000, v95")
    for k in range(4): bf16r(g, YR+k, YR+k)
    for k in range(4): g(f"v_add_f32 v{84+k}, v{YR+k}, v{20+k}")
    for k in range(4): bf16r(g, 84+k, 84+k)
    g(f"s_branch {l_b3}")
    g(f"{l_wo}:")
    srd(g, 48, 12, 5242880)
    g("s_lshl_b32 s52, s30, 7")
    g("s_lshl_b32 s53, s34, 5")
    g("s_add_u32 s52, s52, s53")
    g("s_mul_i32 s52, s52, 1280")
    g("s_lshl_b32 s53, s97, 8")
    g("s_add_u32 s52, s52, s53")
    for j in range(8):
        g(f"buffer_load_dwordx4 v[{WB+4*j}:{WB+4*j+3}], v14, s[48:51], s52 offen nt")
        if j < 7: g("s_add_u32 s52, s52, 5120")
    g(f"v_lshlrev_b32 v78, 9, v{vHalf}")
    g("s_lshl_b32 s52, s34, 5")
    g(f"v_add_u32 v79, s52, v{vG}")
    g("v_lshlrev_b32 v79, 2, v79")
    g("v_add_u32 v78, v78, v79")
    g("s_waitcnt vmcnt(0)")
    g(f"{l_b3}:")
    g.stamp(9)
    g("s_barrier")
    g.stamp(10)
    l_t1 = g.label("t1")
    g("s_cmp_lg_u32 s34, 0")
    g(f"s_cbranch_scc1 {l_t1}")
    g(f"v_lshrrev_b32 v108, 5, v{vLane}")
    g(f"v_and_b32 v109, 31, v{vLane}")
    g("v_lshlrev_b32 v110, 11, v108")
    g("v_lshlrev_b32 v111, 4, v109")
    g("v_add_u32 v110, v110, v111")
    AC = 112; STt = 144
    g("v_lshlrev_b32 v160, 5, v108")
    for s_ in range(2):
        for r in range(0, 4, 2):
            p = s_*4+r
            g(f"ds_read_b128 v[{STt+2*p}:{STt+2*p+3}], v160 offset:{L_ST + s_*64 + r*8}")
    for s_ in range(2):
        for r in range(4):
            p = s_*4+r
            g(f"ds_read_b128 v[{AC+4*p}:{AC+4*p+3}], v110 offset:{L_SP + s_*4096 + r*512}")
    g("s_waitcnt lgkmcnt(8)")
    g(f"v_max3_f32 v161, v{STt}, v{STt+2}, v{STt+4}")
    g(f"v_max3_f32 v161, v161, v{STt+6}, v{STt+8}")
    g(f"v_max3_f32 v161, v161, v{STt+10}, v{STt+12}")
    g(f"v_max_f32 v161, v161, v{STt+14}")
    for p in range(8): g(f"v_sub_f32 v{STt+2*p}, v{STt+2*p}, v161")
    for p in range(8): g(f"v_mul_f32 v{STt+2*p}, {fx(LOG2E)}, v{STt+2*p}")
    for p in range(8): g(f"v_exp_f32 v{STt+2*p}, v{STt+2*p}")
    g("s_nop 0")
    g(f"v_mul_f32 v162, v{STt}, v{STt+1}")
    for p in range(1, 8): g(f"v_fmac_f32 v162, v{STt+2*p}, v{STt+2*p+1}")
    g("s_waitcnt lgkmcnt(0)")
    for k in range(4): g(f"v_mul_f32 v{164+k}, v{AC+k}, v{STt}")
    for p in range(1, 8):
        for k in range(4): g(f"v_fmac_f32 v{164+k}, v{AC+4*p+k}, v{STt+2*p}")
    g("v_lshlrev_b32 v163, 12, v108")
    g("v_add_u32 v163, v163, v111")
    g("buffer_store_dwordx4 v[164:167], v163, s[36:39], s57 offen sc1")
    g("v_mov_b32 v168, v161\nv_mov_b32 v169, v162")
    g("s_mov_b32 exec_lo, 1\ns_mov_b32 exec_hi, 1")
    g("buffer_store_dwordx2 v[168:169], v163, s[36:39], s57 offen offset:512 sc1")
    g("s_mov_b64 exec, -1")
    g.stamp(11)
    g(f"{l_t1}:")
    l_notunit = g.label("notunit")
    g("s_cmp_ge_u32 s97, 5")
    g(f"s_cbranch_scc1 {l_notunit}")
    g(f"v_lshrrev_b32 v108, 5, v{vLane}")
    g(f"v_and_b32 v109, 31, v{vLane}")
    g("v_lshlrev_b32 v110, 10, v108")
    g("v_lshlrev_b32 v111, 4, v109")
    g("v_add_u32 v111, v110, v111")
    g("s_lshl_b32 s52, s30, 2")
    g("s_add_u32 s52, s52, s34")
    g("s_lshl_b32 s52, s52, 12")
    g(f"s_add_u32 s59, s52, {WS_P1}")
    O0, O1, S0, S1 = 112, 116, 120, 122
    def h1loads():
        g(f"buffer_load_dwordx4 v[{O0}:{O0+3}], v111, s[36:39], s59 offen sc1")
        g(f"buffer_load_dwordx4 v[{O1}:{O1+3}], v111, s[36:39], s59 offen offset:2048 sc1")
        g(f"buffer_load_dwordx2 v[{S0}:{S0+1}], v110, s[36:39], s59 offen offset:512 sc1")
        g(f"buffer_load_dwordx2 v[{S1}:{S1+1}], v110, s[36:39], s59 offen offset:2560 sc1")
    poll_valid(g, h1loads, list(range(O0, O0+12)), "h1")
    g.stamp(12)
    g(f"v_max_f32 v124, v{S0}, v{S1}")
    multi_xswap(g, [124], [125], 32, "v_max_f32")
    g(f"v_sub_f32 v{S0}, v{S0}, v124")
    g(f"v_sub_f32 v{S1}, v{S1}, v124")
    g(f"v_mul_f32 v{S0}, {fx(LOG2E)}, v{S0}")
    g(f"v_mul_f32 v{S1}, {fx(LOG2E)}, v{S1}")
    g(f"v_exp_f32 v{S0}, v{S0}")
    g(f"v_exp_f32 v{S1}, v{S1}")
    g("s_nop 0")
    g(f"v_mul_f32 v128, v{S0}, v{S0+1}")
    g(f"v_fmac_f32 v128, v{S1}, v{S1+1}")
    for k in range(4): g(f"v_mul_f32 v{129+k}, v{O0+k}, v{S0}")
    for k in range(4): g(f"v_fmac_f32 v{129+k}, v{O1+k}, v{S1}")
    multi_xswap(g, [128+k for k in range(5)], [134+k for k in range(5)], 32)
    g("v_rcp_f32 v133, v128")
    g("s_nop 0")
    for k in range(4): g(f"v_mul_f32 v{134+k}, v{129+k}, v133")
    for k in range(4): g(f"v_fma_f32 v{138+k}, -v{134+k}, v128, v{129+k}")
    for k in range(4): g(f"v_fma_f32 v{134+k}, v{138+k}, v133, v{134+k}")
    for k in range(4): g(f"v_cvt_pk_bf16_f32 v{136+k if False else 140+k}, v{134+k}, v{134+k}")
    g("v_lshlrev_b32 v134, 4, v109")
    g("s_lshl_b32 s52, s34, 9")
    g("v_add_u32 v134, s52, v134")
    g(f"ds_write_b128 v134, v[140:143] offset:{L_OL}")
    g("s_waitcnt lgkmcnt(0)")
    g("s_barrier")
    diag_mfma(g, 78, 1024, 16, 8, [WB], [DD], SC, MK, L_OL)
    g("s_lshl_b32 s52, s34, 11")
    g("v_add_u32 v135, s52, v103")
    g(f"ds_write_b128 v135, v[{DD}:{DD+3}] offset:{L_YL}")
    g(f"ds_write_b128 v135, v[{DD+4}:{DD+7}] offset:{L_YL+1024}")
    g("s_waitcnt lgkmcnt(0)")
    g("s_barrier")
    for a2 in range(4):
        g(f"ds_read_b128 v[{112+4*a2}:{112+4*a2+3}], v134 offset:{L_YL + a2*2048}")
    g("s_add_u32 s52, s56, s97")
    g("s_lshl_b32 s52, s52, 11")
    g(f"s_add_u32 s52, s52, {WS_Y}")
    g("s_waitcnt lgkmcnt(0)")
    for k in range(4): g(f"v_add_f32 v{112+k}, v{112+k}, v{116+k}")
    for k in range(4): g(f"v_add_f32 v{120+k}, v{120+k}, v{124+k}")
    for k in range(4): g(f"v_add_f32 v{112+k}, v{112+k}, v{120+k}")
    g("s_mov_b32 exec_hi, 0")
    g("buffer_store_dwordx4 v[112:115], v134, s[36:39], s52 offen sc1")
    g("s_mov_b64 exec, -1")
    g.stamp(13)
    if C.stamps: stamp_store(g, "s3", range(4, 15), only_wave=4)
    g("s_endpgm")
    g(f"{l_notunit}:")
    g("s_cmp_lg_u32 s34, 0")
    g("s_cbranch_scc1 L_end")
    l_st = g.label("stonly")
    g("s_cmp_ge_u32 s62, 80")
    g(f"s_cbranch_scc1 {l_st}")
    poll_valid(g, recloads(WS_Y), list(range(YR, YR+16)), "y")
    g.stamp(12)
    red8(YR, YR+4)
    for k in range(4): bf16r(g, YR+k, YR+k)
    for k in range(4): g(f"v_add_f32 v{YR+k}, v{YR+k}, v{80+k}")
    for k in range(4): bf16r(g, YR+k, YR+k)
    for k in range(4): g(f"v_add_f32 v{YR+k}, v{YR+k}, v{84+k}")
    g(f"v_cvt_pk_bf16_f32 v{YR}, v{YR}, v{YR+1}")
    g(f"v_cvt_pk_bf16_f32 v{YR+1}, v{YR+2}, v{YR+3}")
    srd(g, 48, 24, 5120)
    g("v_add_u32 v92, s63, v91")
    g("s_mov_b64 exec, 0xff")
    g(f"buffer_store_dwordx2 v[{YR}:{YR+1}], v92, s[48:51], 0 offen")
    l_ep = g.label("ep")
    g("s_cmp_lg_u32 s62, 0")
    g(f"s_cbranch_scc1 {l_ep}")
    g("s_mov_b64 exec, 1")
    g(f"v_mov_b32 v92, {WS_EPOCH}")
    g(f"buffer_store_dword v{TAG}, v92, s[36:39], 0 offen sc1")
    g(f"{l_ep}:")
    g("s_mov_b64 exec, -1")
    g.stamp(13)
    g(f"{l_st}:")
    if C.stamps: stamp_store(g, "s3", range(4, 15), only_wave=4)
    g("s_endpgm")

def gen():
    g = G()
    g(f"{KN}:")
    g("s_cmp_ge_u32 s2, 256")
    g("s_cbranch_scc1 L_end")
    g.stamp(0)
    g("s_load_dwordx16 s[4:19], s[0:1], 0")
    g("s_load_dwordx8 s[20:27], s[0:1], 64")
    g("s_load_dwordx2 s[28:29], s[0:1], 96")
    g("v_lshrrev_b32 v1, 6, v0")
    g("s_lshr_b32 s30, s2, 3")
    g("v_readfirstlane_b32 s3, v1")
    g("s_and_b32 s31, s2, 7")
    g("v_and_b32 v1, 63, v0")
    g("s_lshr_b32 s32, s31, 2")
    g("s_and_b32 s33, s31, 3")
    g("s_cmp_ge_u32 s3, 4")
    g("s_cbranch_scc1 L_aux")
    streaming(g)
    g("L_aux:")
    aux(g)
    g("L_end:")
    g("s_endpgm")
    return g.text()

HEADER = open("cdna_kernels/" + NAME + ".s.ref").read().split("; Override launch geometry")[0]

def build(path, nv=176):
    body = gen()
    txt = HEADER
    txt += "; Override launch geometry by editing the next line (default: block=256,\n"
    txt += f"; @launch grid=(256,1,1) block=(512,1,1) lds={LDS_BYTES}\n"
    txt += '.amdgcn_target "amdgcn-amd-amdhsa--gfx950"\n.text\n'
    txt += f".globl {KN}\n.p2align 8\n.type {KN},@function\n"
    txt += body
    txt += f""".section .rodata,"a"
.p2align 6
.amdhsa_kernel {KN}
  .amdhsa_next_free_vgpr {nv}
  .amdhsa_next_free_sgpr 102
  .amdhsa_accum_offset {nv}
  .amdhsa_group_segment_fixed_size 0
  .amdhsa_kernarg_size 104
  .amdhsa_user_sgpr_count 2
  .amdhsa_user_sgpr_kernarg_segment_ptr 1
  .amdhsa_system_sgpr_workgroup_id_x 1
.end_amdhsa_kernel
"""
    open(path, "w").write(txt)

if __name__ == "__main__":
    ap = argparse.ArgumentParser()
    ap.add_argument("-o", default="k.s")
    ap.add_argument("--stamps", action="store_true")
    ap.add_argument("--win", type=int, default=8)
    ap.add_argument("--sleepg", type=int, default=16)
    a = ap.parse_args()
    C.stamps = a.stamps; C.win = a.win; C.sleepg = a.sleepg
    build(a.o)
```

```python
import sys, argparse, struct

NAME = "parallel_sum__gqa_block_cached__dense_activation_squared_relu__decode"
KN = NAME + "_kernel"

WS_TICK = 0x000000
WS_EPOCH= 0x0F0000
WS_QP   = 0x100000
WS_P1   = 0x300000
WS_Y    = 0x400000
WS_YM   = 0x500000
WS_STAMP= 0x800000
WS_SIZE = 0x1000000
L_XN  = 0
L_QPL = 20480
L_HPL = 28672
L_QL  = 36864
L_HL  = 37376
L_CNT = 39424
L_SP  = 0
L_ST  = 8192
L_OL  = 12288
L_YL  = 20480
LDS_BYTES = 40960

LOG2E = 1.4426950408889634
OOB = "0x7f000000"

class Cfg:
    spin_max = 200000
    win = 8
    sleepg = 16
    stamps = False
    kpol = 'nt'
    vpol1 = None
    kpol1 = 'nt'
    vpol = 'nt'
C = Cfg()

class G:
    def __init__(s):
        s.o = []; s.nl = 0
    def __call__(s, t):
        for line in t.strip("\n").split("\n"):
            line = line.strip()
            s.o.append(line if line.endswith(":") else "    " + line)
    def label(s, base):
        s.nl += 1
        return f"L_{base}_{s.nl}"
    def stamp(s, k):
        if C.stamps: s(f"s_memrealtime s[{64+2*k}:{65+2*k}]")
    def text(s): return "\n".join(s.o) + "\n"

def f2u(x): return struct.unpack("<I", struct.pack("<f", x))[0]
def fx(x): return f"0x{f2u(x):08x}"

def bf16r(g, dst, src):
    g(f"v_cvt_pk_bf16_f32 v{dst}, v{src}, v{src}")
    g(f"v_and_b32 v{dst}, 0xffff0000, v{dst}")

def multi_xswap(g, regs, tmps, which, op="v_add_f32"):
    for v, t in zip(regs, tmps): g(f"v_mov_b32 v{t}, v{v}")
    g("s_nop 1")
    for v, t in zip(regs, tmps): g(f"v_permlane{which}_swap_b32 v{v}, v{t}")
    g("s_nop 1")
    for v, t in zip(regs, tmps): g(f"{op} v{v}, v{v}, v{t}")

DPPF = "row_mask:0xf bank_mask:0xf"
def row_allreduce(g, regs, op):
    for ctrl in ("row_ror:8", "row_half_mirror", "quad_perm:[3,2,1,0]", "quad_perm:[1,0,3,2]"):
        if len(regs) < 3: g("s_nop 1")
        for v in regs: g(f"{op}_dpp v{v}, v{v}, v{v} {ctrl} {DPPF}")

def srd(g, s, lo, size):
    g(f"s_mov_b32 s{s}, s{lo}\ns_mov_b32 s{s+1}, s{lo+1}\ns_mov_b32 s{s+2}, {size}\ns_mov_b32 s{s+3}, 0x20000")

def stamp_store(g, swave, ks, only_wave):
    l = g.label("st")
    g("s_waitcnt lgkmcnt(0)")
    g(f"s_cmp_eq_u32 {swave}, {only_wave}")
    g(f"s_cbranch_scc0 {l}")
    g("s_lshl_b32 s60, s2, 6")
    g(f"s_add_u32 s60, s60, {WS_STAMP}")
    g("s_add_u32 s62, s28, s60\ns_addc_u32 s63, s29, 0")
    g("s_mov_b64 exec, 1")
    g("v_mov_b32 v40, 0")
    for k in ks:
        g(f"v_mov_b32 v41, s{64+2*k}")
        g(f"global_store_dword v40, v41, s[62:63] offset:{4*k}")
        g("s_nop 1")
    g("s_waitcnt vmcnt(0)")
    g(f"{l}:")

def spin_tail(g, lp, dn, sleep):
    g("s_add_u32 s58, s58, 1")
    g(f"s_cbranch_vccz {dn}")
    g(f"s_cmp_lt_u32 s58, {C.spin_max}")
    g(f"s_cbranch_scc0 {dn}")
    g(f"s_sleep {sleep}")
    g(f"s_branch {lp}")
    g(f"{dn}:")

def poll_valid(g, loads, regs, tag, tmp=127, sleep=1):
    lp = g.label("poll"+tag); dn = g.label("pdone"+tag)
    g("s_mov_b32 s58, 0")
    g(f"{lp}:")
    loads()
    g("s_waitcnt vmcnt(0)")
    g(f"v_max_u32 v{tmp}, v{regs[0]}, v{regs[1]}")
    rest = regs[2:]
    while len(rest) >= 2:
        g(f"v_max3_u32 v{tmp}, v{tmp}, v{rest[0]}, v{rest[1]}"); rest = rest[2:]
    for r in rest: g(f"v_max_u32 v{tmp}, v{tmp}, v{r}")
    g(f"v_cmp_eq_u32 vcc, -1, v{tmp}")
    spin_tail(g, lp, dn, sleep)

def lds_arrive_wait(g, idx, n):
    lp = g.label("lw")
    g(f"v_mov_b32 v173, {L_CNT + 4*idx}")
    g("v_mov_b32 v174, 1")
    g("s_mov_b64 exec, 1")
    g("ds_add_u32 v173, v174")
    g(f"{lp}:")
    g("ds_read_b32 v174, v173")
    g("s_waitcnt lgkmcnt(0)")
    g("v_readfirstlane_b32 s59, v174")
    g(f"s_cmp_lt_u32 s59, {n}")
    g(f"s_cbranch_scc1 {lp}")
    g("s_mov_b64 exec, -1")

def diag_mfma(g, vAaddr, imm_bp, imm_j, nj, Ws, Ds, vA, masks, lds_base):
    raw = vA
    for j in range(nj):
        for bp in range(2):
            g(f"ds_read_b32 v{raw+2*j+bp}, v{vAaddr} offset:{lds_base + bp*imm_bp + j*imm_j}")
    op = vA + 2*nj
    n = 0
    for j in range(nj):
        for bp in range(2):
            g(f"s_waitcnt lgkmcnt({min(15, 2*nj-1-n)})")
            o = op + 4*(n % 2)
            for q in range(4): g(f"v_and_b32 v{o+q}, v{masks+q}, v{raw+2*j+bp}")
            g("s_nop 1")
            for W, D in zip(Ws, Ds):
                c = "0" if j == 0 else f"v[{D+4*bp}:{D+4*bp+3}]"
                g(f"v_mfma_f32_16x16x32_bf16 v[{D+4*bp}:{D+4*bp+3}], v[{o}:{o+3}], v[{W+4*j}:{W+4*j+3}], {c}")
            n += 1
    g("s_nop 7")

def streaming(g, sfx=""):
    TK = 64; LPT = 16; TB = TK*256; NT = 8192//TK; NW = 8
    vL16, vOff, vTk, vZero, vOne, vM, vL = 1, 2, 3, 4, 5, 6, 7
    vAcc = 8; vQ = 16; vS = 20; vU = 36; vK = 48; vV = 112
    g("s_and_b32 s34, s3, 1")
    g("s_lshl_b32 s35, s32, 1")
    g("s_add_u32 s35, s35, s34")
    g("s_lshl_b32 s52, s35, 5")
    g("s_add_u32 s52, s52, s30")
    g("s_lshr_b32 s53, s3, 1")
    g("s_lshl_b32 s54, s33, 1")
    g("s_add_u32 s53, s53, s54")
    g("s_lshl_b32 s54, s52, 21")
    g(f"v_lshlrev_b32 v{vL16}, 4, v1")
    g(f"s_mul_i32 s47, s53, {TB}")
    g(f"v_add_u32 v{vOff}, s47, v{vL16}")
    g("s_mov_b32 s40, 4096\ns_mov_b32 s41, 8192\ns_mov_b32 s42, 12288\ns_mov_b32 s43, 0xffff0000")
    g("s_mov_b32 s34, 0x200000\ns_mov_b32 s35, 0x20000\ns_mov_b32 s38, 0x200000\ns_mov_b32 s39, 0x20000")
    g("s_lshl_b32 s55, s52, 8")
    lz = g.label("z")
    g("s_cmp_lg_u32 s3, 0")
    g(f"s_cbranch_scc1 {lz}")
    g(f"v_mov_b32 v44, {L_CNT}")
    for k in range(4): g(f"v_mov_b32 v{48+k}, 0")
    g("ds_write_b128 v44, v[48:51]")
    g("ds_write_b128 v44, v[48:51] offset:16")
    g(f"{lz}:")
    g("s_waitcnt lgkmcnt(0)")
    g("s_add_u32 s32, s6, s54\ns_addc_u32 s33, s7, 0")
    g("s_add_u32 s36, s8, s54\ns_addc_u32 s37, s9, 0")
    g("s_add_u32 s44, s28, s55\ns_addc_u32 s45, s29, 0")
    if WS_TICK: g(f"s_add_u32 s44, s44, {WS_TICK}\ns_addc_u32 s45, s45, 0")
    g("s_barrier")
    soffs = ["0", "s40", "s41", "s42"]
    def kload(j): g(f"buffer_load_dwordx4 v[{vK+4*j}:{vK+4*j+3}], v{vOff}, s[32:35], {soffs[j//4]} offen offset:{(j%4)*1024} {C.kpol}")
    def vload(j): g(f"buffer_load_dwordx4 v[{vV+4*j}:{vV+4*j+3}], v{vOff}, s[36:39], {soffs[j//4]} offen offset:{(j%4)*1024} {C.vpol}")
    for n in range(2*LPT):
        if n >= C.win: g(f"s_waitcnt vmcnt({C.win-1})")
        if n < LPT: kload(n)
        else: vload(n-LPT)
    g.stamp(1)
    g(f"v_mov_b32 v{vZero}, 0\nv_mov_b32 v{vOne}, 1\nv_mov_b32 v{vM}, 0xff800000\nv_mov_b32 v{vL}, 0")
    for k in range(8): g(f"v_mov_b32 v{vAcc+k}, 0")
    g("s_mov_b32 s48, 0xcccccccc\ns_mov_b32 s49, 0xcccccccc\ns_mov_b32 s50, 0xaaaaaaaa\ns_mov_b32 s51, 0xaaaaaaaa")
    g("s_add_u32 s46, s53, 8")
    g(f"v_and_b32 v44, 0xf0, v{vL16}")
    g("s_and_b32 s54, s3, 1")
    g("s_lshl_b32 s54, s54, 8")
    g("v_add_u32 v44, s54, v44")
    g("s_barrier")
    g(f"ds_read_b128 v[{vQ}:{vQ+3}], v44 offset:{L_QL}")
    g("s_waitcnt lgkmcnt(0)")
    g.stamp(2)
    g(f"s_branch L_entry{sfx}")
    g(f"L_top{sfx}:")
    g(f"s_waitcnt vmcnt({2*LPT})")
    g(f"v_readfirstlane_b32 s46, v{vTk}")
    g(f"s_add_u32 s46, s46, {2*NW}")
    g(f"L_entry{sfx}:")
    g("s_mov_b64 exec, 1")
    g(f"global_atomic_add v{vTk}, v{vZero}, v{vOne}, s[44:45] sc0 sc1")
    g("s_mov_b64 exec, -1")
    g(f"s_mul_i32 s47, s46, {TB}")
    g(f"s_cmp_ge_u32 s46, {NT}")
    g("s_cselect_b32 s47, 0x7fff0000, s47")
    g(f"v_add_u32 v{vOff}, s47, v{vL16}")
    for j in range(LPT):
        g(f"s_waitcnt vmcnt({2*LPT})")
        k = vK + 4*j
        g(f"v_dot2_f32_bf16 v{vS+j}, v{k}, v{vQ}, 0")
        for t in range(1, 4): g(f"v_dot2_f32_bf16 v{vS+j}, v{k+t}, v{vQ+t}, v{vS+j}")
        kload(j)
    for j in range(8):
        g(f"v_add_f32_dpp v{vS+j}, v{vS+j}, v{vS+j} row_ror:8 row_mask:0xf bank_mask:0x3")
        g(f"v_add_f32_dpp v{vS+j}, v{vS+j+8}, v{vS+j+8} row_ror:8 row_mask:0xf bank_mask:0xc")
    for j in range(4):
        g(f"v_add_f32_dpp v{vS+j}, v{vS+j}, v{vS+j} row_half_mirror row_mask:0xf bank_mask:0x5")
        g(f"v_add_f32_dpp v{vS+j}, v{vS+j+4}, v{vS+j+4} row_half_mirror row_mask:0xf bank_mask:0xa")
    u0, w0, u1, w1 = vU, vU+1, vU+2, vU+3
    g(f"v_add_f32_dpp v{u0}, v{vS+0}, v{vS+0} quad_perm:[3,2,1,0] {DPPF}")
    g(f"v_add_f32_dpp v{w0}, v{vS+2}, v{vS+2} quad_perm:[3,2,1,0] {DPPF}")
    g(f"v_add_f32_dpp v{u1}, v{vS+1}, v{vS+1} quad_perm:[3,2,1,0] {DPPF}")
    g(f"v_add_f32_dpp v{w1}, v{vS+3}, v{vS+3} quad_perm:[3,2,1,0] {DPPF}")
    g(f"v_cndmask_b32 v{vS+0}, v{u0}, v{w0}, s[48:49]")
    g(f"v_cndmask_b32 v{vS+1}, v{u1}, v{w1}, s[48:49]")
    g("s_nop 1")
    g(f"v_add_f32_dpp v{u0}, v{vS+0}, v{vS+0} quad_perm:[1,0,3,2] {DPPF}")
    g(f"v_add_f32_dpp v{w0}, v{vS+1}, v{vS+1} quad_perm:[1,0,3,2] {DPPF}")
    sc = vS
    g(f"v_cndmask_b32 v{sc}, v{u0}, v{w0}, s[50:51]")
    g(f"v_cvt_pk_bf16_f32 v{sc}, v{sc}, v{sc}")
    g(f"v_and_b32 v{sc}, s43, v{sc}")
    g(f"v_mul_f32 v{sc}, {fx(128**-0.5)}, v{sc}")
    g(f"v_cvt_pk_bf16_f32 v{sc}, v{sc}, v{sc}")
    g(f"v_and_b32 v{sc}, s43, v{sc}")
    mx = vS+1; al = vS+2; vP = vS+3
    g(f"v_max_f32 v{mx}, v{sc}, v{vM}")
    for ctrl in ("row_ror:8", "row_half_mirror", "quad_perm:[3,2,1,0]", "quad_perm:[1,0,3,2]"):
        g("s_nop 1")
        g(f"v_max_f32_dpp v{mx}, v{mx}, v{mx} {ctrl} {DPPF}")
    g(f"v_sub_f32 v{al}, v{vM}, v{mx}")
    g(f"v_sub_f32 v{vP}, v{sc}, v{mx}")
    g(f"v_mul_f32 v{al}, {fx(LOG2E)}, v{al}")
    g(f"v_mul_f32 v{vP}, {fx(LOG2E)}, v{vP}")
    g(f"v_exp_f32 v{al}, v{al}")
    g(f"v_exp_f32 v{vP}, v{vP}")
    g(f"v_mov_b32 v{vM}, v{mx}")
    g(f"v_fma_f32 v{vL}, v{vL}, v{al}, v{vP}")
    for k in range(8): g(f"v_mul_f32 v{vAcc+k}, v{vAcc+k}, v{al}")
    for j in range(LPT):
        g(f"s_waitcnt vmcnt({2*LPT})")
        v = vV + 4*j
        for t in range(4):
            g(f"v_lshlrev_b32 v{vU+2*t}, 16, v{v+t}")
            g(f"v_and_b32 v{vU+2*t+1}, s43, v{v+t}")
        vload(j)
        for k in range(8):
            g(f"v_fmac_f32_dpp v{vAcc+k}, v{vP}, v{vU+k} row_newbcast:{j} {DPPF}")
    g(f"s_cmp_lt_u32 s46, {NT}")
    g(f"s_cbranch_scc1 L_top{sfx}")
    g.stamp(3)
    g(f"v_lshlrev_b32 v45, 1, v{vL16}")
    g("s_lshl_b32 s54, s3, 11")
    g("v_add_u32 v45, s54, v45")
    g(f"ds_write_b128 v45, v[{vAcc}:{vAcc+3}] offset:{L_SP}")
    g(f"ds_write_b128 v45, v[{vAcc+4}:{vAcc+7}] offset:{L_SP+16}")
    row_allreduce(g, [vL], "v_add_f32")
    g(f"v_lshrrev_b32 v46, 8, v{vL16}")
    g("v_lshlrev_b32 v46, 3, v46")
    g("s_lshl_b32 s54, s3, 5")
    g("v_add_u32 v46, s54, v46")
    g("s_mov_b32 exec_lo, 0x00010001\ns_mov_b32 exec_hi, 0x00010001")
    g(f"ds_write_b64 v46, v[{vM}:{vM+1}] offset:{L_ST}")
    g("s_mov_b64 exec, -1")
    g("s_waitcnt lgkmcnt(0)")
    g("s_barrier")
    if C.stamps: stamp_store(g, "s3", range(0, 4), only_wave=0)
    g("s_endpgm")

def aux(g):
    g("s_sub_u32 s34, s3, 4")
    vLane, vC, vG, vHalf = 1, 2, 3, 12
    MK = 104; TAG = 170
    g(f"v_and_b32 v{vC}, 15, v{vLane}")
    g(f"v_lshrrev_b32 v{vG}, 4, v{vLane}")
    g(f"v_lshlrev_b32 v11, 4, v{vC}")
    g("s_mul_i32 s52, s34, 1280")
    g("s_mul_i32 s53, s31, 160")
    g("s_add_u32 s53, s53, s52")
    g(f"v_cmp_gt_u32 vcc, 40, v{vLane}")
    g(f"v_lshlrev_b32 v9, 5, v{vLane}")
    g("v_add_u32 v9, s52, v9")
    g(f"v_lshlrev_b32 v15, 2, v{vLane}")
    g("v_add_u32 v15, s53, v15")
    g(f"v_mov_b32 v13, {OOB}")
    g("v_cndmask_b32 v9, v13, v9, vcc")
    g("v_cndmask_b32 v15, v13, v15, vcc")
    g(f"v_lshlrev_b32 v10, 13, v{vG}")
    g("v_add_u32 v10, v10, v11")
    g(f"v_cmp_gt_u32 vcc, 7, v{vC}")
    g(f"v_mul_u32_u24 v14, 3456, v{vG}")
    g("v_add_u32 v14, v14, v11")
    g("v_cndmask_b32 v13, v13, v14, vcc")
    g("s_mul_i32 s35, s31, 80")
    g("s_mul_i32 s52, s34, 20")
    g("s_add_u32 s35, s35, s52")
    g("s_lshl_b32 s52, s35, 13")
    g("s_lshl_b32 s53, s30, 8")
    g("s_add_u32 s52, s52, s53")
    g("s_mul_i32 s54, s35, 3456")
    g("s_mul_i32 s55, s30, 108")
    g("s_add_u32 s54, s54, s55")
    g("s_mov_b32 s42, 5120\ns_mov_b32 s43, 0x20000\ns_mov_b32 s46, 5242880\ns_mov_b32 s47, 0x20000")
    g("s_mov_b32 s50, 2211840\ns_mov_b32 s51, 0x20000")
    g("s_waitcnt lgkmcnt(0)")
    g("s_mov_b32 s40, s4\ns_mov_b32 s41, s5")
    X = 16
    g(f"buffer_load_dwordx4 v[{X}:{X+3}], v9, s[40:43], 0 offen")
    g(f"buffer_load_dwordx4 v[{X+4}:{X+7}], v9, s[40:43], 0 offen offset:16")
    g(f"buffer_load_dword v{X+8}, v15, s[40:43], 0 offen")
    g("s_mov_b32 s44, s10\ns_mov_b32 s45, s11")
    WQ = 36; W1 = 56; B1R = 76
    for j in range(5):
        g(f"buffer_load_dwordx4 v[{WQ+4*j}:{WQ+4*j+3}], v10, s[44:47], s52 offen nt")
        if j < 4: g("s_add_u32 s52, s52, 32768")
    g("s_mov_b32 s48, s16\ns_mov_b32 s49, s17")
    for j in range(5):
        g(f"buffer_load_dwordx4 v[{W1+4*j}:{W1+4*j+3}], v13, s[48:51], s54 offen nt")
        if j < 4: g("s_add_u32 s54, s54, 13824")
    g(f"s_load_dword s96, s[28:29], {WS_EPOCH}")
    srd(g, 36, 28, WS_SIZE)
    g(f"v_lshlrev_b32 v8, 4, v{vLane}")
    for k in range(4): g(f"v_mov_b32 v{4+k}, -1")
    g("s_mov_b32 s97, 255\ns_mov_b32 s98, 255\ns_mov_b32 s99, 0\ns_mov_b32 s62, 255")
    g("s_sub_u32 s52, s31, 1")
    g("s_cmp_lt_u32 s31, 3\ns_cselect_b32 s97, s31, s97")
    g("s_cmp_eq_u32 s31, 4\ns_cselect_b32 s97, s52, s97")
    g("s_cmp_eq_u32 s31, 5\ns_cselect_b32 s97, s52, s97")
    g("s_mul_i32 s52, s30, 3")
    g("s_cmp_eq_u32 s31, 3\ns_cselect_b32 s98, 0, s98\ns_cselect_b32 s99, 2, s99\ns_cselect_b32 s62, s52, s62")
    g("s_add_u32 s52, s52, 1")
    g("s_cmp_eq_u32 s31, 6\ns_cselect_b32 s98, 2, s98\ns_cselect_b32 s99, 2, s99\ns_cselect_b32 s62, s52, s62")
    g("s_add_u32 s52, s52, 1")
    g("s_cmp_eq_u32 s31, 7\ns_cselect_b32 s98, 4, s98\ns_cselect_b32 s99, 1, s99\ns_cselect_b32 s62, s52, s62")
    g("s_lshl_b32 s52, s30, 2")
    g("s_lshl_b32 s53, s32, 1")
    g("s_add_u32 s52, s52, s53")
    g("s_lshl_b32 s52, s52, 2")
    g("s_add_u32 s52, s52, s33")
    g("s_lshl_b32 s52, s52, 10")
    g(f"s_add_u32 s57, s52, {WS_P1}")
    g("s_mul_i32 s56, s30, 5")
    g("s_lshr_b32 s53, s34, 1")
    g("s_add_u32 s52, s56, s98")
    g("s_add_u32 s52, s52, s53")
    g("s_lshl_b32 s52, s52, 11")
    g("s_and_b32 s54, s34, 1")
    g("s_lshl_b32 s54, s54, 10")
    g("s_add_u32 s52, s52, s54")
    g(f"s_add_u32 s52, s52, {WS_YM}")
    g("s_cmp_ge_u32 s53, s99")
    g(f"s_cselect_b32 s52, {OOB}, s52")
    g("v_add_u32 v78, s52, v8")
    g("buffer_store_dwordx4 v[4:7], v78, s[36:39], 0 offen sc1")
    g("s_add_u32 s52, s56, s97")
    g("s_lshl_b32 s52, s52, 11")
    g(f"s_add_u32 s52, s52, {WS_Y}")
    g("s_cmp_ge_u32 s97, 5")
    g(f"s_cselect_b32 s52, {OOB}, s52")
    g("s_add_u32 s53, s52, 1024")
    g("s_add_u32 s54, s57, 4096")
    g("s_cmp_eq_u32 s34, 0")
    g("s_cselect_b32 s52, s57, s52")
    g("s_cselect_b32 s53, s54, s53")
    g("s_cmp_ge_u32 s34, 2")
    g(f"s_cselect_b32 s52, {OOB}, s52")
    g(f"s_cselect_b32 s53, {OOB}, s53")
    g("v_add_u32 v78, s52, v8")
    g("v_add_u32 v79, s53, v8")
    g("s_lshl_b32 s54, s32, 6")
    g("s_add_u32 s54, s54, s30")
    g("s_lshl_b32 s54, s54, 8")
    if WS_TICK: g(f"s_add_u32 s54, s54, {WS_TICK}")
    g("s_cmp_lg_u32 s33, 0")
    g(f"s_cselect_b32 s54, {OOB}, s54")
    g("s_cmp_lg_u32 s34, 2")
    g(f"s_cselect_b32 s54, {OOB}, s54")
    g(f"v_lshlrev_b32 v171, 13, v{vLane}")
    g(f"v_cmp_gt_u32 vcc, 2, v{vLane}")
    g(f"v_mov_b32 v172, {OOB}")
    g("v_add_u32 v171, s54, v171")
    g("v_cndmask_b32 v171, v172, v171, vcc")
    g("v_mov_b32 v172, 0")
    g("buffer_store_dwordx4 v[4:7], v78, s[36:39], 0 offen sc1")
    g("buffer_store_dwordx4 v[4:7], v79, s[36:39], 0 offen sc1")
    g("buffer_store_dword v172, v171, s[36:39], 0 offen sc1")
    NCLR = 4
    g("s_barrier")
    g(f"v_and_b32 v100, 7, v{vLane}")
    g("v_lshrrev_b32 v101, 1, v100")
    g("v_and_b32 v100, 1, v100")
    g("v_lshlrev_b32 v100, 4, v100")
    g("v_mov_b32 v102, 0xffff")
    g("v_lshlrev_b32 v102, v100, v102")
    for q in range(4):
        g(f"v_cmp_eq_u32 vcc, {q}, v101")
        g("s_nop 1")
        g(f"v_cndmask_b32 v{MK+q}, 0, v102, vcc")
    g(f"v_lshrrev_b32 v{vHalf}, 3, v{vLane}")
    g(f"v_and_b32 v{vHalf}, 1, v{vHalf}")
    g(f"v_mul_u32_u24 v78, 320, v{vHalf}")
    g("s_mul_i32 s52, s34, 20")
    g(f"v_add_u32 v79, s52, v{vG}")
    g("v_lshlrev_b32 v79, 2, v79")
    g("v_add_u32 v78, v78, v79")
    g("s_mul_i32 s52, s34, 320")
    g(f"v_lshlrev_b32 v79, 3, v{vLane}")
    g("v_add_u32 v79, s52, v79")
    g("v_mov_b32 v90, 0x3f803f80")
    g("v_mov_b32 v91, 0\nv_mov_b32 v92, 0\nv_mov_b32 v93, 0\nv_mov_b32 v94, 0")
    g(f"v_lshrrev_b32 v100, 1, v{vG}")
    g("v_lshlrev_b32 v100, 9, v100")
    g(f"v_lshlrev_b32 v101, 5, v{vC}")
    g("v_add_u32 v100, v100, v101")
    g(f"v_and_b32 v101, 1, v{vG}")
    g("v_lshlrev_b32 v101, 4, v101")
    g("v_add_u32 v103, v100, v101")
    g(f"v_mul_u32_u24 v14, 1280, v{vG}")
    g("v_add_u32 v14, v14, v11")
    g(f"s_waitcnt vmcnt({10+NCLR})")
    g.stamp(4)
    for t in range(0, 8, 2):
        g(f"v_dot2c_f32_bf16 v91, v{X+t}, v90")
        g(f"v_dot2c_f32_bf16 v92, v{X+t}, v{X+t}")
        g(f"v_dot2c_f32_bf16 v93, v{X+t+1}, v90")
        g(f"v_dot2c_f32_bf16 v94, v{X+t+1}, v{X+t+1}")
    g(f"v_lshlrev_b32 v95, 16, v{X+8}")
    g(f"v_and_b32 v96, 0xffff0000, v{X+8}")
    g("s_nop 0")
    g("v_add_f32 v91, v91, v93")
    g("v_add_f32 v92, v92, v94")
    row_allreduce(g, [91, 92], "v_add_f32")
    multi_xswap(g, [91, 92], [93, 94], 16)
    multi_xswap(g, [91, 92], [93, 94], 32)
    g(f"v_mul_f32 v91, {fx(1/640)}, v91")
    g(f"v_mul_f32 v92, {fx(1/640)}, v92")
    g("v_fma_f32 v92, -v91, v91, v92")
    g("v_max_f32 v92, 0, v92")
    g("v_cvt_pk_bf16_f32 v91, v91, v92")
    g("v_and_b32 v92, 0xffff0000, v91")
    g("v_lshlrev_b32 v91, 16, v91")
    g(f"v_add_f32 v92, {fx(1e-5)}, v92")
    g("v_sub_f32 v95, v95, v91")
    g("v_sub_f32 v96, v96, v91")
    bf16r(g, 92, 92)
    g("v_cvt_pk_bf16_f32 v95, v95, v96")
    g("v_sqrt_f32 v92, v92")
    g("v_and_b32 v96, 0xffff0000, v95")
    g("v_lshlrev_b32 v95, 16, v95")
    bf16r(g, 92, 92)
    g("v_rcp_f32 v93, v92")
    g("s_nop 0")
    g("v_mul_f32 v97, v95, v93")
    g("v_mul_f32 v98, v96, v93")
    g("v_fma_f32 v99, -v97, v92, v95")
    g("v_fma_f32 v100, -v98, v92, v96")
    g("v_fma_f32 v97, v99, v93, v97")
    g("v_fma_f32 v98, v100, v93, v98")
    g("v_cvt_pk_bf16_f32 v99, v98, v98")
    g("v_cvt_pk_bf16_f32 v98, v97, v97")
    g("s_mov_b32 exec_hi, 0xff")
    g(f"ds_write_b64 v79, v[98:99] offset:{L_XN}")
    g("s_mov_b64 exec, -1")
    g("s_waitcnt lgkmcnt(0)")
    lds_arrive_wait(g, 0, 4)
    g(f"s_waitcnt vmcnt({NCLR})")
    g.stamp(14)
    DQ = 148; DH = 156
    diag_mfma(g, 78, 640, 16, 5, [WQ, W1], [DQ, DH], 108, MK, L_XN)
    g("s_lshl_b32 s52, s34, 11")
    g("v_add_u32 v100, s52, v103")
    g(f"ds_write_b128 v100, v[{DQ}:{DQ+3}] offset:{L_QPL}")
    g(f"ds_write_b128 v100, v[{DQ+4}:{DQ+7}] offset:{L_QPL+1024}")
    g(f"ds_write_b128 v100, v[{DH}:{DH+3}] offset:{L_HPL}")
    g(f"ds_write_b128 v100, v[{DH+4}:{DH+7}] offset:{L_HPL+1024}")
    g("s_waitcnt vmcnt(0) lgkmcnt(0)")
    g("s_add_u32 s96, s96, 1")
    g(f"v_mov_b32 v{TAG}, s96")
    lds_arrive_wait(g, 1, 4)
    g.stamp(5)
    g(f"v_lshlrev_b32 v15, 3, v{vLane}")
    g("s_lshl_b32 s52, s34, 9")
    g("v_add_u32 v15, s52, v15")
    for a2 in range(4):
        g(f"ds_read_b64 v[{16+2*a2}:{17+2*a2}], v15 offset:{L_QPL + a2*2048}")
    for a2 in range(4):
        g(f"ds_read_b64 v[{28+2*a2}:{29+2*a2}], v15 offset:{L_HPL + a2*2048}")
    g("s_lshl_b32 s52, s2, 13")
    g("s_lshl_b32 s53, s34, 10")
    g("s_add_u32 s52, s52, s53")
    g(f"s_add_u32 s52, s52, {WS_QP}")
    def pubsum(R):
        for k in range(2): g(f"v_add_f32 v{R+k}, v{R+k}, v{R+2+k}")
        for k in range(2): g(f"v_add_f32 v{R+4+k}, v{R+4+k}, v{R+6+k}")
        g(f"v_add_f32 v{R+8}, v{R}, v{R+4}")
        g(f"v_add_f32 v{R+10}, v{R+1}, v{R+5}")
        g(f"v_mov_b32 v{R+9}, v{TAG}")
        g(f"v_mov_b32 v{R+11}, v{TAG}")
    g("s_waitcnt lgkmcnt(4)")
    pubsum(16)
    g("buffer_store_dwordx4 v[24:27], v8, s[36:39], s52 offen sc1")
    g("s_waitcnt lgkmcnt(0)")
    pubsum(28)
    g("s_add_u32 s52, s52, 4096")
    g("s_mov_b64 exec, 0x0fffffff")
    g("buffer_store_dwordx4 v[36:39], v8, s[36:39], s52 offen sc1")
    g("s_mov_b64 exec, -1")
    g.stamp(6)
    def gather(sbase, GR, tag, pre_sleep=0):
        lp = g.label("pg"+tag); dn = g.label("pgd"+tag)
        g("s_mov_b32 s58, 0")
        if pre_sleep: g(f"s_sleep {pre_sleep}")
        g(f"{lp}:")
        g(f"s_mov_b32 s53, {sbase}")
        for t in range(8):
            g(f"buffer_load_dwordx4 v[{GR+4*t}:{GR+4*t+3}], v8, s[36:39], s53 offen sc1")
            if t < 7: g("s_add_u32 s53, s53, 8192")
        g("s_waitcnt vmcnt(0)")
        g(f"v_xor_b32 v{GR+32}, v{GR+1}, v{TAG}")
        for t in range(8):
            for k in (1, 3):
                if t == 0 and k == 1: continue
                g(f"v_xor_b32 v{GR+33}, v{GR+4*t+k}, v{TAG}")
                g(f"v_or_b32 v{GR+32}, v{GR+32}, v{GR+33}")
        g(f"v_cmp_ne_u32 vcc, 0, v{GR+32}")
        spin_tail(g, lp, dn, 2)
        for k in (0, 2):
            for t in range(0, 8, 2): g(f"v_add_f32 v{GR+4*t+k}, v{GR+4*t+k}, v{GR+4*(t+1)+k}")
            g(f"v_add_f32 v{GR+k}, v{GR+k}, v{GR+8+k}")
            g(f"v_add_f32 v{GR+16+k}, v{GR+16+k}, v{GR+24+k}")
            g(f"v_add_f32 v{GR+k}, v{GR+k}, v{GR+16+k}")
    GQ = 112
    l_noq = g.label("noq")
    g("s_cmp_ge_u32 s34, 2")
    g(f"s_cbranch_scc1 {l_noq}")
    g("s_lshl_b32 s52, s30, 16")
    g("s_lshl_b32 s53, s32, 1")
    g("s_add_u32 s53, s53, s34")
    g("s_lshl_b32 s53, s53, 10")
    g("s_add_u32 s52, s52, s53")
    g(f"s_add_u32 s52, s52, {WS_QP}")
    gather("s52", GQ, "q", C.sleepg)
    g(f"v_cvt_pk_bf16_f32 v{GQ}, v{GQ}, v{GQ+2}")
    g(f"v_lshlrev_b32 v17, 2, v{vLane}")
    g("s_lshl_b32 s52, s34, 8")
    g("v_add_u32 v17, s52, v17")
    g(f"ds_write_b32 v17, v{GQ} offset:{L_QL}")
    g("s_waitcnt lgkmcnt(0)")
    g(f"{l_noq}:")
    g.stamp(7)
    g("s_barrier")
    g.stamp(8)
    WB = 16; SC = 48; DD = 80
    l_wo = g.label("wo"); l_b3 = g.label("b3")
    g("s_cmp_eq_u32 s99, 0")
    g(f"s_cbranch_scc1 {l_wo}")
    srd(g, 48, 18, 3456)
    g("s_mul_i32 s52, s30, 108")
    g(f"v_lshlrev_b32 v15, 2, v{vLane}")
    g("v_add_u32 v15, s52, v15")
    g(f"buffer_load_dword v{B1R}, v15, s[48:51], 0 offen")
    srd(g, 48, 20, 2211840)
    g("s_mul_i32 s52, s30, 54")
    g("s_lshl_b32 s53, s34, 4")
    g("s_add_u32 s52, s52, s53")
    g("s_mul_i32 s52, s52, 1280")
    g("s_lshl_b32 s54, s98, 8")
    g("s_add_u32 s52, s52, s54")
    g(f"v_add_u32 v77, s53, v{vG}")
    for jj in range(4):
        g(f"v_add_u32 v{88+jj}, s52, v14")
        g(f"v_cmp_gt_u32 vcc, {54-4*jj}, v77")
        g(f"v_mov_b32 v92, {OOB}")
        g("s_add_u32 s52, s52, 5120")
        g(f"v_cndmask_b32 v{88+jj}, v92, v{88+jj}, vcc")
    for jj in range(4):
        g(f"buffer_load_dwordx4 v[{WB+4*jj}:{WB+4*jj+3}], v{88+jj}, s[48:51], 0 offen nt")
    l_u1 = g.label("u1")
    g("s_cmp_lt_u32 s99, 2")
    g(f"s_cbranch_scc1 {l_u1}")
    for jj in range(4):
        g(f"buffer_load_dwordx4 v[{WB+16+4*jj}:{WB+16+4*jj+3}], v{88+jj}, s[48:51], 0 offen offset:256 nt")
    g(f"{l_u1}:")
    g("s_lshl_b32 s52, s30, 16")
    g("s_lshl_b32 s53, s34, 10")
    g("s_add_u32 s52, s52, s53")
    g(f"s_add_u32 s52, s52, {WS_QP+4096}")
    g("s_mov_b64 exec, 0x0fffffff")
    gather("s52", GQ, "h")
    g("s_mov_b64 exec, -1")
    GH = [GQ, GQ+2]
    g(f"v_lshlrev_b32 v52, 16, v{B1R}")
    g(f"v_and_b32 v53, 0xffff0000, v{B1R}")
    for k in range(2): bf16r(g, GH[k], GH[k])
    for k in range(2): g(f"v_add_f32 v{GH[k]}, v{GH[k]}, v{52+k}")
    for k in range(2): bf16r(g, GH[k], GH[k])
    for k in range(2): g(f"v_max_f32 v{GH[k]}, 0, v{GH[k]}")
    for k in range(2): g(f"v_mul_f32 v{GH[k]}, v{GH[k]}, v{GH[k]}")
    g(f"v_cvt_pk_bf16_f32 v54, v{GH[0]}, v{GH[0]}")
    g(f"v_cvt_pk_bf16_f32 v55, v{GH[1]}, v{GH[1]}")
    g(f"v_cmp_gt_u32 vcc, 27, v{vLane}")
    g("s_nop 1")
    g("v_cndmask_b32 v54, 0, v54, vcc")
    g("v_cndmask_b32 v55, 0, v55, vcc")
    g(f"v_lshlrev_b32 v101, 3, v{vLane}")
    g("s_lshl_b32 s52, s34, 8")
    g("v_add_u32 v101, s52, v101")
    g("s_mov_b32 exec_hi, 0")
    g(f"ds_write_b64 v101, v[54:55] offset:{L_HL}")
    g("s_mov_b64 exec, -1")
    g("s_waitcnt lgkmcnt(0)")
    lds_arrive_wait(g, 2, 4)
    g(f"v_lshlrev_b32 v78, 8, v{vHalf}")
    g("v_lshlrev_b32 v79, 2, v77")
    g("v_add_u32 v78, v78, v79")
    g("s_waitcnt vmcnt(0)")
    DD2 = 92
    diag_mfma(g, 78, 512, 16, 4, [WB, WB+16], [DD, DD2], SC, MK, L_HL)
    g("s_lshl_b32 s52, s34, 11")
    g("v_add_u32 v100, s52, v103")
    g(f"ds_write_b128 v100, v[{DD}:{DD+3}] offset:{L_QPL}")
    g(f"ds_write_b128 v100, v[{DD+4}:{DD+7}] offset:{L_QPL+1024}")
    g(f"ds_write_b128 v100, v[{DD2}:{DD2+3}] offset:{L_HPL}")
    g(f"ds_write_b128 v100, v[{DD2+4}:{DD2+7}] offset:{L_HPL+1024}")
    g("s_waitcnt lgkmcnt(0)")
    lds_arrive_wait(g, 3, 4)
    g(f"v_and_b32 v109, 31, v{vLane}")
    g(f"v_lshrrev_b32 v108, 5, v{vLane}")
    g(f"v_mul_u32_u24 v110, {L_HPL-L_QPL}, v108")
    g("v_lshlrev_b32 v111, 4, v109")
    g("s_lshl_b32 s52, s34, 9")
    g("v_add_u32 v111, s52, v111")
    g("v_add_u32 v110, v110, v111")
    for a2 in range(4):
        g(f"ds_read_b128 v[{112+4*a2}:{112+4*a2+3}], v110 offset:{L_QPL + a2*2048}")
    g("s_add_u32 s52, s56, s98")
    g("s_lshl_b32 s52, s52, 11")
    g(f"s_add_u32 s52, s52, {WS_YM}")
    g("v_lshlrev_b32 v110, 11, v108")
    g("v_add_u32 v110, v110, v111")
    g("s_waitcnt lgkmcnt(0)")
    for k in range(4): g(f"v_add_f32 v{112+k}, v{112+k}, v{116+k}")
    for k in range(4): g(f"v_add_f32 v{120+k}, v{120+k}, v{124+k}")
    for k in range(4): g(f"v_add_f32 v{112+k}, v{112+k}, v{120+k}")
    g("s_cmp_lt_u32 s99, 2")
    g("s_cselect_b32 exec_hi, 0, -1")
    g("buffer_store_dwordx4 v[112:115], v110, s[36:39], s52 offen sc1")
    g("s_mov_b64 exec, -1")
    g("s_cmp_ge_u32 s62, 80")
    g(f"s_cbranch_scc1 {l_b3}")
    g("s_cmp_lg_u32 s34, 0")
    g(f"s_cbranch_scc1 {l_b3}")
    g("s_mul_i32 s52, s62, 205")
    g("s_lshr_b32 s52, s52, 12")
    g("s_mul_i32 s53, s52, 20")
    g("s_sub_u32 s53, s62, s53")
    g("s_lshr_b32 s54, s53, 2")
    g("s_and_b32 s53, s53, 3")
    g("s_lshl_b32 s55, s54, 11")
    g("s_lshl_b32 s63, s52, 9")
    g("s_add_u32 s55, s55, s63")
    g("s_lshl_b32 s63, s53, 7")
    g("s_add_u32 s55, s55, s63")
    g("s_mul_i32 s63, s52, 640")
    g("s_lshl_b32 s54, s54, 7")
    g("s_lshl_b32 s53, s53, 5")
    g("s_add_u32 s54, s54, s53")
    g("s_add_u32 s63, s63, s54")
    g("s_lshl_b32 s63, s63, 1")
    g("s_lshl_b32 s54, s54, 1")
    lp = g.label("pollall"); dn = g.label("pollall_done")
    g(f"v_lshlrev_b32 v16, 13, v{vLane}")
    g("s_mov_b32 s58, 0")
    g(f"{lp}:")
    g(f"s_mov_b32 s59, {WS_QP}")
    for t in range(4):
        g(f"buffer_load_dwordx2 v[{18+2*t}:{19+2*t}], v16, s[36:39], s59 offen sc1")
        if t < 3: g(f"s_add_u32 s59, s59, {64*8192}")
    g("s_waitcnt vmcnt(0)")
    g(f"v_xor_b32 v26, v19, v{TAG}")
    for t in range(1, 4):
        g(f"v_xor_b32 v27, v{19+2*t}, v{TAG}")
        g("v_or_b32 v26, v26, v27")
    g("v_cmp_ne_u32 vcc, 0, v26")
    spin_tail(g, lp, dn, 8)
    g(f"v_lshrrev_b32 v88, 3, v{vLane}")
    g(f"v_and_b32 v89, 7, v{vLane}")
    g("v_lshlrev_b32 v90, 4, v89")
    g("v_lshlrev_b32 v91, 3, v89")
    srd(g, 48, 22, 1280)
    g("v_add_u32 v92, s54, v91")
    g("buffer_load_dwordx2 v[94:95], v92, s[48:51], 0 offen")
    g("v_add_u32 v92, s63, v91")
    g("buffer_load_dwordx2 v[96:97], v92, s[40:43], 0 offen")
    g("v_mul_u32_u24 v93, 10240, v88")
    g("v_add_u32 v93, v93, v90")
    YR = 16
    def recloads(base):
        def f():
            g(f"s_add_u32 s52, s55, {base}")
            for t in range(4):
                g(f"buffer_load_dwordx4 v[{YR+4*t}:{YR+4*t+3}], v93, s[36:39], s52 offen sc1")
                if t < 3: g("s_add_u32 s52, s52, 81920")
        return f
    def red8(R, T):
        for t in range(1, 4):
            for k in range(4): g(f"v_add_f32 v{R+k}, v{R+k}, v{R+4*t+k}")
        g("s_nop 1")
        for k in range(4): g(f"v_add_f32_dpp v{R+k}, v{R+k}, v{R+k} row_ror:8 {DPPF}")
        multi_xswap(g, [R+k for k in range(4)], [T+k for k in range(4)], 16)
        multi_xswap(g, [R+k for k in range(4)], [T+k for k in range(4)], 32)
    poll_valid(g, recloads(WS_YM), list(range(YR, YR+16)), "ym", sleep=8)
    red8(YR, YR+4)
    g("v_lshlrev_b32 v80, 16, v96\nv_and_b32 v81, 0xffff0000, v96\nv_lshlrev_b32 v82, 16, v97\nv_and_b32 v83, 0xffff0000, v97")
    g("v_lshlrev_b32 v20, 16, v94\nv_and_b32 v21, 0xffff0000, v94\nv_lshlrev_b32 v22, 16, v95\nv_and_b32 v23, 0xffff0000, v95")
    for k in range(4): bf16r(g, YR+k, YR+k)
    for k in range(4): g(f"v_add_f32 v{84+k}, v{YR+k}, v{20+k}")
    for k in range(4): bf16r(g, 84+k, 84+k)
    g(f"s_branch {l_b3}")
    g(f"{l_wo}:")
    srd(g, 48, 12, 5242880)
    g("s_lshl_b32 s52, s30, 7")
    g("s_lshl_b32 s53, s34, 5")
    g("s_add_u32 s52, s52, s53")
    g("s_mul_i32 s52, s52, 1280")
    g("s_lshl_b32 s53, s97, 8")
    g("s_add_u32 s52, s52, s53")
    for j in range(8):
        g(f"buffer_load_dwordx4 v[{WB+4*j}:{WB+4*j+3}], v14, s[48:51], s52 offen nt")
        if j < 7: g("s_add_u32 s52, s52, 5120")
    g(f"v_lshlrev_b32 v78, 9, v{vHalf}")
    g("s_lshl_b32 s52, s34, 5")
    g(f"v_add_u32 v79, s52, v{vG}")
    g("v_lshlrev_b32 v79, 2, v79")
    g("v_add_u32 v78, v78, v79")
    g("s_waitcnt vmcnt(0)")
    g(f"{l_b3}:")
    g.stamp(9)
    g("s_barrier")
    g.stamp(10)
    l_t1 = g.label("t1")
    g("s_cmp_lg_u32 s34, 0")
    g(f"s_cbranch_scc1 {l_t1}")
    g(f"v_lshrrev_b32 v108, 5, v{vLane}")
    g(f"v_and_b32 v109, 31, v{vLane}")
    g("v_lshlrev_b32 v110, 11, v108")
    g("v_lshlrev_b32 v111, 4, v109")
    g("v_add_u32 v110, v110, v111")
    AC = 112; STt = 144
    g("v_lshlrev_b32 v160, 5, v108")
    for s_ in range(2):
        for r in range(0, 4, 2):
            p = s_*4+r
            g(f"ds_read_b128 v[{STt+2*p}:{STt+2*p+3}], v160 offset:{L_ST + s_*64 + r*8}")
    for s_ in range(2):
        for r in range(4):
            p = s_*4+r
            g(f"ds_read_b128 v[{AC+4*p}:{AC+4*p+3}], v110 offset:{L_SP + s_*4096 + r*512}")
    g("s_waitcnt lgkmcnt(8)")
    g(f"v_max3_f32 v161, v{STt}, v{STt+2}, v{STt+4}")
    g(f"v_max3_f32 v161, v161, v{STt+6}, v{STt+8}")
    g(f"v_max3_f32 v161, v161, v{STt+10}, v{STt+12}")
    g(f"v_max_f32 v161, v161, v{STt+14}")
    for p in range(8): g(f"v_sub_f32 v{STt+2*p}, v{STt+2*p}, v161")
    for p in range(8): g(f"v_mul_f32 v{STt+2*p}, {fx(LOG2E)}, v{STt+2*p}")
    for p in range(8): g(f"v_exp_f32 v{STt+2*p}, v{STt+2*p}")
    g("s_nop 0")
    g(f"v_mul_f32 v162, v{STt}, v{STt+1}")
    for p in range(1, 8): g(f"v_fmac_f32 v162, v{STt+2*p}, v{STt+2*p+1}")
    g("s_waitcnt lgkmcnt(0)")
    for k in range(4): g(f"v_mul_f32 v{164+k}, v{AC+k}, v{STt}")
    for p in range(1, 8):
        for k in range(4): g(f"v_fmac_f32 v{164+k}, v{AC+4*p+k}, v{STt+2*p}")
    g("v_lshlrev_b32 v163, 12, v108")
    g("v_add_u32 v163, v163, v111")
    g("buffer_store_dwordx4 v[164:167], v163, s[36:39], s57 offen sc1")
    g("v_mov_b32 v168, v161\nv_mov_b32 v169, v162")
    g("s_mov_b32 exec_lo, 1\ns_mov_b32 exec_hi, 1")
    g("buffer_store_dwordx2 v[168:169], v163, s[36:39], s57 offen offset:512 sc1")
    g("s_mov_b64 exec, -1")
    g.stamp(11)
    g(f"{l_t1}:")
    l_notunit = g.label("notunit")
    g("s_cmp_ge_u32 s97, 5")
    g(f"s_cbranch_scc1 {l_notunit}")
    g(f"v_lshrrev_b32 v108, 5, v{vLane}")
    g(f"v_and_b32 v109, 31, v{vLane}")
    g("v_lshlrev_b32 v110, 10, v108")
    g("v_lshlrev_b32 v111, 4, v109")
    g("v_add_u32 v111, v110, v111")
    g("s_lshl_b32 s52, s30, 2")
    g("s_add_u32 s52, s52, s34")
    g("s_lshl_b32 s52, s52, 12")
    g(f"s_add_u32 s59, s52, {WS_P1}")
    O0, O1, S0, S1 = 112, 116, 120, 122
    def h1loads():
        g(f"buffer_load_dwordx4 v[{O0}:{O0+3}], v111, s[36:39], s59 offen sc1")
        g(f"buffer_load_dwordx4 v[{O1}:{O1+3}], v111, s[36:39], s59 offen offset:2048 sc1")
        g(f"buffer_load_dwordx2 v[{S0}:{S0+1}], v110, s[36:39], s59 offen offset:512 sc1")
        g(f"buffer_load_dwordx2 v[{S1}:{S1+1}], v110, s[36:39], s59 offen offset:2560 sc1")
    poll_valid(g, h1loads, list(range(O0, O0+12)), "h1")
    g.stamp(12)
    g(f"v_max_f32 v124, v{S0}, v{S1}")
    multi_xswap(g, [124], [125], 32, "v_max_f32")
    g(f"v_sub_f32 v{S0}, v{S0}, v124")
    g(f"v_sub_f32 v{S1}, v{S1}, v124")
    g(f"v_mul_f32 v{S0}, {fx(LOG2E)}, v{S0}")
    g(f"v_mul_f32 v{S1}, {fx(LOG2E)}, v{S1}")
    g(f"v_exp_f32 v{S0}, v{S0}")
    g(f"v_exp_f32 v{S1}, v{S1}")
    g("s_nop 0")
    g(f"v_mul_f32 v128, v{S0}, v{S0+1}")
    g(f"v_fmac_f32 v128, v{S1}, v{S1+1}")
    for k in range(4): g(f"v_mul_f32 v{129+k}, v{O0+k}, v{S0}")
    for k in range(4): g(f"v_fmac_f32 v{129+k}, v{O1+k}, v{S1}")
    multi_xswap(g, [128+k for k in range(5)], [134+k for k in range(5)], 32)
    g("v_rcp_f32 v133, v128")
    g("s_nop 0")
    for k in range(4): g(f"v_mul_f32 v{134+k}, v{129+k}, v133")
    for k in range(4): g(f"v_fma_f32 v{138+k}, -v{134+k}, v128, v{129+k}")
    for k in range(4): g(f"v_fma_f32 v{134+k}, v{138+k}, v133, v{134+k}")
    for k in range(4): g(f"v_cvt_pk_bf16_f32 v{136+k if False else 140+k}, v{134+k}, v{134+k}")
    g("v_lshlrev_b32 v134, 4, v109")
    g("s_lshl_b32 s52, s34, 9")
    g("v_add_u32 v134, s52, v134")
    g(f"ds_write_b128 v134, v[140:143] offset:{L_OL}")
    g("s_waitcnt lgkmcnt(0)")
    g("s_barrier")
    diag_mfma(g, 78, 1024, 16, 8, [WB], [DD], SC, MK, L_OL)
    g("s_lshl_b32 s52, s34, 11")
    g("v_add_u32 v135, s52, v103")
    g(f"ds_write_b128 v135, v[{DD}:{DD+3}] offset:{L_YL}")
    g(f"ds_write_b128 v135, v[{DD+4}:{DD+7}] offset:{L_YL+1024}")
    g("s_waitcnt lgkmcnt(0)")
    g("s_barrier")
    for a2 in range(4):
        g(f"ds_read_b128 v[{112+4*a2}:{112+4*a2+3}], v134 offset:{L_YL + a2*2048}")
    g("s_add_u32 s52, s56, s97")
    g("s_lshl_b32 s52, s52, 11")
    g(f"s_add_u32 s52, s52, {WS_Y}")
    g("s_waitcnt lgkmcnt(0)")
    for k in range(4): g(f"v_add_f32 v{112+k}, v{112+k}, v{116+k}")
    for k in range(4): g(f"v_add_f32 v{120+k}, v{120+k}, v{124+k}")
    for k in range(4): g(f"v_add_f32 v{112+k}, v{112+k}, v{120+k}")
    g("s_mov_b32 exec_hi, 0")
    g("buffer_store_dwordx4 v[112:115], v134, s[36:39], s52 offen sc1")
    g("s_mov_b64 exec, -1")
    g.stamp(13)
    if C.stamps: stamp_store(g, "s3", range(4, 15), only_wave=4)
    g("s_endpgm")
    g(f"{l_notunit}:")
    g("s_cmp_lg_u32 s34, 0")
    g("s_cbranch_scc1 L_end")
    l_st = g.label("stonly")
    g("s_cmp_ge_u32 s62, 80")
    g(f"s_cbranch_scc1 {l_st}")
    poll_valid(g, recloads(WS_Y), list(range(YR, YR+16)), "y")
    g.stamp(12)
    red8(YR, YR+4)
    for k in range(4): bf16r(g, YR+k, YR+k)
    for k in range(4): g(f"v_add_f32 v{YR+k}, v{YR+k}, v{80+k}")
    for k in range(4): bf16r(g, YR+k, YR+k)
    for k in range(4): g(f"v_add_f32 v{YR+k}, v{YR+k}, v{84+k}")
    g(f"v_cvt_pk_bf16_f32 v{YR}, v{YR}, v{YR+1}")
    g(f"v_cvt_pk_bf16_f32 v{YR+1}, v{YR+2}, v{YR+3}")
    srd(g, 48, 24, 5120)
    g("v_add_u32 v92, s63, v91")
    g("s_mov_b64 exec, 0xff")
    g(f"buffer_store_dwordx2 v[{YR}:{YR+1}], v92, s[48:51], 0 offen")
    l_ep = g.label("ep")
    g("s_cmp_lg_u32 s62, 0")
    g(f"s_cbranch_scc1 {l_ep}")
    g("s_mov_b64 exec, 1")
    g(f"v_mov_b32 v92, {WS_EPOCH}")
    g(f"buffer_store_dword v{TAG}, v92, s[36:39], 0 offen sc1")
    g(f"{l_ep}:")
    g("s_mov_b64 exec, -1")
    g.stamp(13)
    g(f"{l_st}:")
    if C.stamps: stamp_store(g, "s3", range(4, 15), only_wave=4)
    g("s_endpgm")

def gen():
    g = G()
    g(f"{KN}:")
    g("s_cmp_ge_u32 s2, 256")
    g("s_cbranch_scc1 L_end")
    g.stamp(0)
    g("s_load_dwordx16 s[4:19], s[0:1], 0")
    g("s_load_dwordx8 s[20:27], s[0:1], 64")
    g("s_load_dwordx2 s[28:29], s[0:1], 96")
    g("v_lshrrev_b32 v1, 6, v0")
    g("s_lshr_b32 s30, s2, 3")
    g("v_readfirstlane_b32 s3, v1")
    g("s_and_b32 s31, s2, 7")
    g("v_and_b32 v1, 63, v0")
    g("s_lshr_b32 s32, s31, 2")
    g("s_and_b32 s33, s31, 3")
    g("s_cmp_ge_u32 s3, 4")
    g("s_cbranch_scc1 L_aux")
    if C.vpol1 is not None:
        g("s_cmp_eq_u32 s32, 1")
        g("s_cbranch_scc1 L_stream1")
        streaming(g)
        g("L_stream1:")
        C.vpol = C.vpol1; C.kpol = C.kpol1
        streaming(g, "_1")
    else:
        streaming(g)
    g("L_aux:")
    aux(g)
    g("L_end:")
    g("s_endpgm")
    return g.text()

HEADER = open("cdna_kernels/" + NAME + ".s.ref").read().split("; Override launch geometry")[0]

def build(path, nv=176):
    body = gen()
    txt = HEADER
    txt += "; Override launch geometry by editing the next line (default: block=256,\n"
    txt += f"; @launch grid=(256,1,1) block=(512,1,1) lds={LDS_BYTES}\n"
    txt += '.amdgcn_target "amdgcn-amd-amdhsa--gfx950"\n.text\n'
    txt += f".globl {KN}\n.p2align 8\n.type {KN},@function\n"
    txt += body
    txt += f""".section .rodata,"a"
.p2align 6
.amdhsa_kernel {KN}
  .amdhsa_next_free_vgpr {nv}
  .amdhsa_next_free_sgpr 102
  .amdhsa_accum_offset {nv}
  .amdhsa_group_segment_fixed_size 0
  .amdhsa_kernarg_size 104
  .amdhsa_user_sgpr_count 2
  .amdhsa_user_sgpr_kernarg_segment_ptr 1
  .amdhsa_system_sgpr_workgroup_id_x 1
.end_amdhsa_kernel
"""
    open(path, "w").write(txt)

if __name__ == "__main__":
    ap = argparse.ArgumentParser()
    ap.add_argument("-o", default="k.s")
    ap.add_argument("--stamps", action="store_true")
    ap.add_argument("--win", type=int, default=8)
    ap.add_argument("--sleepg", type=int, default=16)
    ap.add_argument("--kpol", default="nt")
    ap.add_argument("--vpol", default="nt")
    ap.add_argument("--vpol1", default=None)
    ap.add_argument("--kpol1", default="nt")
    a = ap.parse_args()
    C.vpol1 = None if a.vpol1 is None else a.vpol1.replace("_"," "); C.kpol1 = a.kpol1.replace("_"," ")
    C.kpol = a.kpol.replace("_"," "); C.vpol = a.vpol.replace("_"," ")
    C.stamps = a.stamps; C.win = a.win; C.sleepg = a.sleepg
    build(a.o)
```

```python
import sys, argparse, struct

NAME = "parallel_sum__gqa_block_cached__dense_activation_squared_relu__decode"
KN = NAME + "_kernel"

WS_TICK = 0x000000
WS_EPOCH= 0x0F0000
WS_QP   = 0x100000
WS_P1   = 0x300000
WS_Y    = 0x400000
WS_YM   = 0x500000
WS_STAMP= 0x800000
WS_SIZE = 0x1000000
L_XN  = 0
L_QPL = 2048
L_HPL = 10240
L_QL  = 18432
L_HL  = 18944
L_CNT = 19968
L_SP  = 20480
L_ST  = 28672
L_OL  = 28928
L_WT  = 30720
LDS_BYTES = 63488

LOG2E = 1.4426950408889634
OOB = "0x7f000000"

class Cfg:
    spin_max = 200000
    win = 8
    sleepg = 16
    stamps = False
    qmap = 2
    kpol = 'nt'; vpol = 'nt'
    kx = True
    r4 = 64; r2 = 24
C = Cfg()

class G:
    def __init__(s):
        s.o = []; s.nl = 0
    def __call__(s, t):
        for line in t.strip("\n").split("\n"):
            line = line.strip()
            s.o.append(line if line.endswith(":") else "    " + line)
    def label(s, base):
        s.nl += 1
        return f"L_{base}_{s.nl}"
    def stamp(s, k):
        if C.stamps: s(f"s_memrealtime s[{64+2*k}:{65+2*k}]")
    def text(s): return "\n".join(s.o) + "\n"

def f2u(x): return struct.unpack("<I", struct.pack("<f", x))[0]
def fx(x): return f"0x{f2u(x):08x}"

def bf16r(g, dst, src):
    g(f"v_cvt_pk_bf16_f32 v{dst}, v{src}, v{src}")
    g(f"v_and_b32 v{dst}, 0xffff0000, v{dst}")

def multi_xswap(g, regs, tmps, which, op="v_add_f32"):
    for v, t in zip(regs, tmps): g(f"v_mov_b32 v{t}, v{v}")
    g("s_nop 1")
    for v, t in zip(regs, tmps): g(f"v_permlane{which}_swap_b32 v{v}, v{t}")
    g("s_nop 1")
    for v, t in zip(regs, tmps): g(f"{op} v{v}, v{v}, v{t}")

DPPF = "row_mask:0xf bank_mask:0xf"
def row_allreduce(g, regs, op):
    for ctrl in ("row_ror:8", "row_half_mirror", "quad_perm:[3,2,1,0]", "quad_perm:[1,0,3,2]"):
        if len(regs) < 3: g("s_nop 1")
        for v in regs: g(f"{op}_dpp v{v}, v{v}, v{v} {ctrl} {DPPF}")

def srd(g, s, lo, size):
    g(f"s_mov_b32 s{s}, s{lo}\ns_mov_b32 s{s+1}, s{lo+1}\ns_mov_b32 s{s+2}, {size}\ns_mov_b32 s{s+3}, 0x20000")

def stamp_store(g, swave, ks, only_wave):
    l = g.label("st")
    g("s_waitcnt lgkmcnt(0)")
    g(f"s_cmp_eq_u32 {swave}, {only_wave}")
    g(f"s_cbranch_scc0 {l}")
    g("s_lshl_b32 s60, s2, 6")
    g(f"s_add_u32 s60, s60, {WS_STAMP}")
    g("s_add_u32 s62, s28, s60\ns_addc_u32 s63, s29, 0")
    g("s_mov_b64 exec, 1")
    g("v_mov_b32 v40, 0")
    for k in ks:
        g(f"v_mov_b32 v41, s{64+2*k}")
        g(f"global_store_dword v40, v41, s[62:63] offset:{4*k}")
        g("s_nop 1")
    g("s_waitcnt vmcnt(0)")
    g(f"{l}:")

TAG = 170
def tagw(g, regs):
    for r in regs: g(f"v_bfi_b32 v{r}, s95, v{TAG}, v{r}")

def spin_tail(g, lp, dn, sleep):
    g("s_add_u32 s58, s58, 1")
    g(f"s_cbranch_vccz {dn}")
    g(f"s_cmp_lt_u32 s58, {C.spin_max}")
    g(f"s_cbranch_scc0 {dn}")
    if sleep: g(f"s_sleep {sleep}")
    g(f"s_branch {lp}")
    g(f"{dn}:")

def tagcheck(g, regs, t0, t1):
    g(f"v_xor_b32 v{t0}, v{regs[0]}, v{TAG}")
    rest = regs[1:]
    while rest:
        if len(rest) >= 2:
            g(f"v_xor_b32 v{t1}, v{rest[0]}, v{TAG}")
            g(f"v_xor_b32 v{t1+1}, v{rest[1]}, v{TAG}")
            g(f"v_or3_b32 v{t0}, v{t0}, v{t1}, v{t1+1}")
            rest = rest[2:]
        else:
            g(f"v_xor_b32 v{t1}, v{rest[0]}, v{TAG}")
            g(f"v_or_b32 v{t0}, v{t0}, v{t1}")
            rest = rest[1:]
    g(f"v_and_b32 v{t0}, 0xff, v{t0}")
    g(f"v_cmp_ne_u32 vcc, 0, v{t0}")

def poll_tag(g, loads, regs, name, tmp=126, sleep=1):
    lp = g.label("poll"+name); dn = g.label("pdone"+name)
    g("s_mov_b32 s58, 0")
    g(f"{lp}:")
    loads()
    g("s_waitcnt vmcnt(0)")
    tagcheck(g, regs, tmp, tmp+1)
    spin_tail(g, lp, dn, sleep)

def lds_arrive_wait(g, idx, n):
    lp = g.label("lw")
    g(f"v_mov_b32 v173, {L_CNT + 4*idx}")
    g("v_mov_b32 v174, 1")
    g("s_mov_b64 exec, 1")
    g("ds_add_u32 v173, v174")
    g(f"{lp}:")
    g("ds_read_b32 v174, v173")
    g("s_waitcnt lgkmcnt(0)")
    g("v_readfirstlane_b32 s59, v174")
    g(f"s_cmp_lt_u32 s59, {n}")
    g(f"s_cbranch_scc1 {lp}")
    g("s_mov_b64 exec, -1")

def diag_mfma(g, vAaddr, imm_bp, imm_j, nj, Ws, Ds, vA, masks, lds_base):
    raw = vA
    for j in range(nj):
        for bp in range(2):
            g(f"ds_read_b32 v{raw+2*j+bp}, v{vAaddr} offset:{lds_base + bp*imm_bp + j*imm_j}")
    op = vA + 2*nj
    n = 0
    for j in range(nj):
        for bp in range(2):
            g(f"s_waitcnt lgkmcnt({min(15, 2*nj-1-n)})")
            o = op + 4*(n % 2)
            for q in range(4): g(f"v_and_b32 v{o+q}, v{masks+q}, v{raw+2*j+bp}")
            g("s_nop 1")
            for W, D in zip(Ws, Ds):
                c = "0" if j == 0 else f"v[{D+4*bp}:{D+4*bp+3}]"
                g(f"v_mfma_f32_16x16x32_bf16 v[{D+4*bp}:{D+4*bp+3}], v[{o}:{o+3}], v[{W+4*j}:{W+4*j+3}], {c}")
            n += 1
    g("s_nop 7")

def streaming(g):
    LPT = 16; UB = 4096; NU = 512; NW = 8
    vL16, vTk, vZero, vN, vM, vL = 1, 3, 4, 5, 6, 7
    vAcc = 8; vQ = 16; vS = 20; vU = 36; vK = 48; vV = 112; vKx = 176
    vOffA = 44; vC = 2; vNinf = 240 if C.kx else 176
    vOffB = vNinf + 1
    NSTAT = 3 if C.kx else 2
    g("s_and_b32 s34, s3, 1")
    g("s_lshl_b32 s35, s32, 1")
    g("s_add_u32 s35, s35, s34")
    g("s_lshl_b32 s52, s35, 5")
    g("s_add_u32 s52, s52, s30")
    g("s_lshr_b32 s53, s3, 1")
    g("s_lshl_b32 s54, s33, 1")
    g("s_add_u32 s53, s53, s54")
    g("s_lshl_b32 s54, s52, 21")
    g(f"v_and_b32 v{vC}, 15, v1")
    g(f"v_lshlrev_b32 v{vL16}, 4, v1")
    g("s_lshl_b32 s47, s53, 14")
    def setoff(base, sreg_or_none, add=0, frm=None):
        if frm is None:
            g(f"v_add_u32 v{base}, {sreg_or_none}, v{vL16}")
        else:
            g(f"v_add_u32 v{base}, {add}, v{frm}")
        for k in range(1, 4): g(f"v_add_u32 v{base+k}, {4096*k}, v{base}")
    setoff(vOffA, "s47")
    setoff(vOffB, None, NW*4*UB, vOffA)
    g("s_mov_b32 s43, 0xffff0000")
    g("s_mov_b32 s34, 0x200000\ns_mov_b32 s35, 0x20000\ns_mov_b32 s38, 0x200000\ns_mov_b32 s39, 0x20000")
    g("s_lshl_b32 s55, s52, 8")
    lz = g.label("z")
    g("s_cmp_lg_u32 s3, 0")
    g(f"s_cbranch_scc1 {lz}")
    g(f"v_mov_b32 v36, {L_CNT}")
    for k in range(4): g(f"v_mov_b32 v{48+k}, 0")
    g("ds_write_b128 v36, v[48:51]")
    g("ds_write_b128 v36, v[48:51] offset:16")
    g(f"{lz}:")
    g("s_waitcnt lgkmcnt(0)")
    g("s_add_u32 s32, s6, s54\ns_addc_u32 s33, s7, 0")
    g("s_add_u32 s36, s8, s54\ns_addc_u32 s37, s9, 0")
    g("s_add_u32 s44, s28, s55\ns_addc_u32 s45, s29, 0")
    if WS_TICK: g(f"s_add_u32 s44, s44, {WS_TICK}\ns_addc_u32 s45, s45, 0")
    g("s_barrier")
    def kload(j, base, off): g(f"buffer_load_dwordx4 v[{base+4*j}:{base+4*j+3}], v{off+j//4}, s[32:35], 0 offen offset:{(j%4)*1024} {C.kpol}")
    def vload(j, off): g(f"buffer_load_dwordx4 v[{vV+4*j}:{vV+4*j+3}], v{off+j//4}, s[36:39], 0 offen offset:{(j%4)*1024} {C.vpol}")
    npre = 3*LPT if C.kx else 2*LPT
    for n in range(npre):
        if n >= C.win: g(f"s_waitcnt vmcnt({C.win-1})")
        if n < LPT: kload(n, vK, vOffA)
        elif n < 2*LPT: vload(n-LPT, vOffA)
        else: kload(n-2*LPT, vKx, vOffB)
    g.stamp(1)
    g(f"v_mov_b32 v{vZero}, 0\nv_mov_b32 v{vN}, 4\nv_mov_b32 v{vM}, 0xff800000\nv_mov_b32 v{vL}, 0")
    g(f"v_mov_b32 v{vNinf}, 0xff800000")
    for k in range(8): g(f"v_mov_b32 v{vAcc+k}, 0")
    g("s_mov_b32 s48, 0xcccccccc\ns_mov_b32 s49, 0xcccccccc\ns_mov_b32 s50, 0xaaaaaaaa\ns_mov_b32 s51, 0xaaaaaaaa")
    g(f"v_and_b32 v36, 0xf0, v{vL16}")
    g("s_and_b32 s54, s3, 1")
    g("s_lshl_b32 s54, s54, 8")
    g("v_add_u32 v36, s54, v36")
    g("s_mov_b32 s60, 16")
    g("s_mov_b32 s61, 4")
    g("s_barrier")
    g(f"ds_read_b128 v[{vQ}:{vQ+3}], v36 offset:{L_QL}")
    g("s_waitcnt lgkmcnt(0)")
    g.stamp(2)

    def atomic():
        g("s_mov_b64 exec, 1")
        g(f"global_atomic_add v{vTk}, v{vZero}, v{vN}, s[44:45] sc0 sc1")
        g("s_mov_b64 exec, -1")
    def kphase(kreg, wait, refill):
        for j in range(LPT):
            w = wait(j)
            if w is not None: g(f"s_waitcnt vmcnt({w})")
            k = kreg + 4*j
            g(f"v_dot2_f32_bf16 v{vS+j}, v{k}, v{vQ}, 0")
            for t in range(1, 4): g(f"v_dot2_f32_bf16 v{vS+j}, v{k+t}, v{vQ+t}, v{vS+j}")
            if refill is not None: kload(j, kreg, refill)
        if refill is None: g("s_nop 1")
    vP = vS+3
    def softmax(mask):
        for j in range(8):
            g(f"v_add_f32_dpp v{vS+j}, v{vS+j}, v{vS+j} row_ror:8 row_mask:0xf bank_mask:0x3")
            g(f"v_add_f32_dpp v{vS+j}, v{vS+j+8}, v{vS+j+8} row_ror:8 row_mask:0xf bank_mask:0xc")
        for j in range(4):
            g(f"v_add_f32_dpp v{vS+j}, v{vS+j}, v{vS+j} row_half_mirror row_mask:0xf bank_mask:0x5")
            g(f"v_add_f32_dpp v{vS+j}, v{vS+j+4}, v{vS+j+4} row_half_mirror row_mask:0xf bank_mask:0xa")
        u0, w0, u1, w1 = vU, vU+1, vU+2, vU+3
        g(f"v_add_f32_dpp v{u0}, v{vS+0}, v{vS+0} quad_perm:[3,2,1,0] {DPPF}")
        g(f"v_add_f32_dpp v{w0}, v{vS+2}, v{vS+2} quad_perm:[3,2,1,0] {DPPF}")
        g(f"v_add_f32_dpp v{u1}, v{vS+1}, v{vS+1} quad_perm:[3,2,1,0] {DPPF}")
        g(f"v_add_f32_dpp v{w1}, v{vS+3}, v{vS+3} quad_perm:[3,2,1,0] {DPPF}")
        if mask: g(f"v_cmp_gt_u32 vcc, s60, v{vC}")
        g(f"v_cndmask_b32 v{vS+0}, v{u0}, v{w0}, s[48:49]")
        g(f"v_cndmask_b32 v{vS+1}, v{u1}, v{w1}, s[48:49]")
        g("s_nop 1")
        g(f"v_add_f32_dpp v{u0}, v{vS+0}, v{vS+0} quad_perm:[1,0,3,2] {DPPF}")
        g(f"v_add_f32_dpp v{w0}, v{vS+1}, v{vS+1} quad_perm:[1,0,3,2] {DPPF}")
        sc = vS
        g(f"v_cndmask_b32 v{sc}, v{u0}, v{w0}, s[50:51]")
        g(f"v_cvt_pk_bf16_f32 v{sc}, v{sc}, v{sc}")
        g(f"v_and_b32 v{sc}, s43, v{sc}")
        g(f"v_mul_f32 v{sc}, {fx(128**-0.5)}, v{sc}")
        g(f"v_cvt_pk_bf16_f32 v{sc}, v{sc}, v{sc}")
        g(f"v_and_b32 v{sc}, s43, v{sc}")
        if mask: g(f"v_cndmask_b32 v{sc}, v{vNinf}, v{sc}, vcc")
        mx = vS+1; al = vS+2
        g(f"v_max_f32 v{mx}, v{sc}, v{vM}")
        for ctrl in ("row_ror:8", "row_half_mirror", "quad_perm:[3,2,1,0]", "quad_perm:[1,0,3,2]"):
            g("s_nop 1")
            g(f"v_max_f32_dpp v{mx}, v{mx}, v{mx} {ctrl} {DPPF}")
        g(f"v_sub_f32 v{al}, v{vM}, v{mx}")
        g(f"v_sub_f32 v{vP}, v{sc}, v{mx}")
        g(f"v_mul_f32 v{al}, {fx(LOG2E)}, v{al}")
        g(f"v_mul_f32 v{vP}, {fx(LOG2E)}, v{vP}")
        g(f"v_exp_f32 v{al}, v{al}")
        g(f"v_exp_f32 v{vP}, v{vP}")
        g(f"v_mov_b32 v{vM}, v{mx}")
        g(f"v_fma_f32 v{vL}, v{vL}, v{al}, v{vP}")
        for k in range(8): g(f"v_mul_f32 v{vAcc+k}, v{vAcc+k}, v{al}")
    def vphase(wait, refill):
        for j in range(LPT):
            g(f"s_waitcnt vmcnt({wait})")
            v = vV + 4*j
            for t in range(4):
                g(f"v_lshlrev_b32 v{vU+2*t}, 16, v{v+t}")
                g(f"v_and_b32 v{vU+2*t+1}, s43, v{v+t}")
            vload(j, refill)
            for k in range(8):
                g(f"v_fmac_f32_dpp v{vAcc+k}, v{vP}, v{vU+k} row_newbcast:{j} {DPPF}")

    if C.kx:
        setoff(vOffA, None, NW*4*UB, vOffB)
        kphase(vK, lambda j: 47, vOffA)
        softmax(False)
        vphase(47, vOffB)
        atomic()
        kphase(vKx, lambda j: 33 if j == 0 else None, None)
        softmax(False)
        vphase(16, vOffA)
        g("s_mov_b32 s62, 16")
        g("s_waitcnt vmcnt(16)")
        g("s_branch L_top2")
    else:
        g(f"s_lshl_b32 s46, s53, 2")
        g(f"s_add_u32 s46, s46, {NW*4}")
        g("s_mov_b32 s62, 16")
        g("s_branch L_entry")
    g("L_top:")
    g(f"s_waitcnt vmcnt({2*LPT})")
    g("L_top2:")
    g(f"v_readfirstlane_b32 s46, v{vTk}")
    g(f"s_add_u32 s46, s46, {NSTAT*NW*4}")
    g("L_entry:")
    g("s_mov_b32 s60, s62")
    g("s_add_u32 s47, s46, s61")
    g(f"s_min_u32 s52, s47, {NU}")
    g("s_sub_u32 s62, s52, s46")
    g("s_lshl_b32 s62, s62, 2")
    g("s_lshl_b32 s52, s52, 12")
    g(f"s_cmp_ge_u32 s46, {NU}")
    g("s_cselect_b32 s52, 0, s52")
    g("s_mov_b32 s34, s52")
    g("s_mov_b32 s38, s52")
    g("s_mov_b32 s61, 1")
    g(f"s_cmp_lt_u32 s47, {NU-C.r2}")
    g("s_cselect_b32 s61, 2, s61")
    g(f"s_cmp_lt_u32 s47, {NU-C.r4}")
    g("s_cselect_b32 s61, 4, s61")
    g(f"v_mov_b32 v{vN}, s61")
    atomic()
    g("s_lshl_b32 s47, s46, 12")
    setoff(vOffA, "s47")
    kphase(vK, lambda j: 32, vOffA)
    softmax(True)
    vphase(32, vOffA)
    g(f"s_cmp_lt_u32 s46, {NU}")
    g("s_cbranch_scc1 L_top")
    g.stamp(3)
    g(f"v_lshlrev_b32 v45, 1, v{vL16}")
    g("s_lshl_b32 s54, s3, 11")
    g("v_add_u32 v45, s54, v45")
    g(f"ds_write_b128 v45, v[{vAcc}:{vAcc+3}] offset:{L_SP}")
    g(f"ds_write_b128 v45, v[{vAcc+4}:{vAcc+7}] offset:{L_SP+16}")
    row_allreduce(g, [vL], "v_add_f32")
    g(f"v_lshrrev_b32 v46, 8, v{vL16}")
    g("v_lshlrev_b32 v46, 3, v46")
    g("s_lshl_b32 s54, s3, 5")
    g("v_add_u32 v46, s54, v46")
    g("s_mov_b32 exec_lo, 0x00010001\ns_mov_b32 exec_hi, 0x00010001")
    g(f"ds_write_b64 v46, v[{vM}:{vM+1}] offset:{L_ST}")
    g("s_mov_b64 exec, -1")
    g("s_waitcnt lgkmcnt(0)")
    g("s_barrier")
    if C.stamps: stamp_store(g, "s3", range(0, 4), only_wave=0)
    g("s_endpgm")
    return vOffB + 4

def aux(g):
    g("s_sub_u32 s34, s3, 4")
    vLane, vC, vG, vHalf = 1, 2, 3, 12
    MK = 104
    g(f"v_and_b32 v{vC}, 15, v{vLane}")
    g(f"v_lshrrev_b32 v{vG}, 4, v{vLane}")
    g(f"v_lshlrev_b32 v11, 4, v{vC}")
    g("s_mul_i32 s52, s34, 1280")
    g("s_mul_i32 s53, s31, 160")
    g("s_add_u32 s53, s53, s52")
    g(f"v_cmp_gt_u32 vcc, 40, v{vLane}")
    g(f"v_lshlrev_b32 v9, 5, v{vLane}")
    g("v_add_u32 v9, s52, v9")
    g(f"v_lshlrev_b32 v15, 2, v{vLane}")
    g("v_add_u32 v15, s53, v15")
    g(f"v_mov_b32 v13, {OOB}")
    g("v_cndmask_b32 v9, v13, v9, vcc")
    g("v_cndmask_b32 v15, v13, v15, vcc")
    g(f"v_lshlrev_b32 v10, 13, v{vG}")
    g("v_add_u32 v10, v10, v11")
    g("s_mul_i32 s35, s31, 80")
    g("s_mul_i32 s52, s34, 20")
    g("s_add_u32 s35, s35, s52")
    g("s_lshl_b32 s52, s35, 13")
    g("s_lshl_b32 s53, s30, 8")
    g("s_add_u32 s52, s52, s53")
    g("s_mov_b32 s42, 5120\ns_mov_b32 s43, 0x20000\ns_mov_b32 s46, 5242880\ns_mov_b32 s47, 0x20000")
    g("s_waitcnt lgkmcnt(0)")
    g("s_mov_b32 s40, s4\ns_mov_b32 s41, s5")
    X = 16
    g(f"buffer_load_dwordx4 v[{X}:{X+3}], v9, s[40:43], 0 offen")
    g(f"buffer_load_dwordx4 v[{X+4}:{X+7}], v9, s[40:43], 0 offen offset:16")
    g(f"buffer_load_dword v{X+8}, v15, s[40:43], 0 offen")
    g("s_mov_b32 s44, s10\ns_mov_b32 s45, s11")
    WQ = 36; W1 = 56; B1R = 76
    for j in range(5):
        g(f"buffer_load_dwordx4 v[{WQ+4*j}:{WQ+4*j+3}], v10, s[44:47], s52 offen nt")
        if j < 4: g("s_add_u32 s52, s52, 32768")
    g(f"s_load_dword s96, s[28:29], {WS_EPOCH}")
    srd(g, 36, 28, WS_SIZE)
    g("s_lshl_b32 s54, s32, 6")
    g("s_add_u32 s54, s54, s30")
    g("s_lshl_b32 s54, s54, 8")
    if WS_TICK: g(f"s_add_u32 s54, s54, {WS_TICK}")
    g("s_cmp_lg_u32 s33, 0")
    g(f"s_cselect_b32 s54, {OOB}, s54")
    g("s_cmp_lg_u32 s34, 2")
    g(f"s_cselect_b32 s54, {OOB}, s54")
    g(f"v_lshlrev_b32 v171, 13, v{vLane}")
    g(f"v_cmp_gt_u32 vcc, 2, v{vLane}")
    g(f"v_mov_b32 v172, {OOB}")
    g("v_add_u32 v171, s54, v171")
    g("v_cndmask_b32 v171, v172, v171, vcc")
    g("v_mov_b32 v172, 0")
    g("buffer_store_dword v172, v171, s[36:39], 0 offen sc1")
    NCLR = 1
    g("s_barrier")
    g(f"v_lshlrev_b32 v8, 4, v{vLane}")
    g("s_mov_b32 s95, 0xff")
    g("s_mov_b32 s97, 255\ns_mov_b32 s98, 255\ns_mov_b32 s99, 0\ns_mov_b32 s62, 255")
    g("s_sub_u32 s52, s31, 1")
    g("s_cmp_lt_u32 s31, 3\ns_cselect_b32 s97, s31, s97")
    g("s_cmp_eq_u32 s31, 4\ns_cselect_b32 s97, s52, s97")
    g("s_cmp_eq_u32 s31, 5\ns_cselect_b32 s97, s52, s97")
    g("s_mul_i32 s52, s30, 3")
    g("s_cmp_eq_u32 s31, 3\ns_cselect_b32 s98, 0, s98\ns_cselect_b32 s99, 2, s99\ns_cselect_b32 s62, s52, s62")
    g("s_add_u32 s52, s52, 1")
    g("s_cmp_eq_u32 s31, 6\ns_cselect_b32 s98, 2, s98\ns_cselect_b32 s99, 2, s99\ns_cselect_b32 s62, s52, s62")
    g("s_add_u32 s52, s52, 1")
    g("s_cmp_eq_u32 s31, 7\ns_cselect_b32 s98, 4, s98\ns_cselect_b32 s99, 1, s99\ns_cselect_b32 s62, s52, s62")
    g("s_lshl_b32 s52, s30, 2")
    g("s_lshl_b32 s53, s32, 1")
    g("s_add_u32 s52, s52, s53")
    g("s_lshl_b32 s52, s52, 2")
    g("s_add_u32 s52, s52, s33")
    g("s_lshl_b32 s52, s52, 10")
    g(f"s_add_u32 s57, s52, {WS_P1}")
    g("s_mul_i32 s56, s30, 5")
    g(f"v_and_b32 v100, 7, v{vLane}")
    g("v_lshrrev_b32 v101, 1, v100")
    g("v_and_b32 v100, 1, v100")
    g("v_lshlrev_b32 v100, 4, v100")
    g("v_mov_b32 v102, 0xffff")
    g("v_lshlrev_b32 v102, v100, v102")
    for q in range(4):
        g(f"v_cmp_eq_u32 vcc, {q}, v101")
        g("s_nop 1")
        g(f"v_cndmask_b32 v{MK+q}, 0, v102, vcc")
    g(f"v_lshrrev_b32 v{vHalf}, 3, v{vLane}")
    g(f"v_and_b32 v{vHalf}, 1, v{vHalf}")
    g(f"v_mul_u32_u24 v102, 320, v{vHalf}")
    g("s_mul_i32 s52, s34, 20")
    g(f"v_add_u32 v79, s52, v{vG}")
    g("v_lshlrev_b32 v79, 2, v79")
    g("v_add_u32 v102, v102, v79")
    g("s_mul_i32 s52, s34, 320")
    g(f"v_lshlrev_b32 v79, 3, v{vLane}")
    g("v_add_u32 v79, s52, v79")
    g("v_mov_b32 v90, 0x3f803f80")
    g("v_mov_b32 v91, 0\nv_mov_b32 v92, 0\nv_mov_b32 v93, 0\nv_mov_b32 v94, 0")
    g(f"v_lshrrev_b32 v100, 1, v{vG}")
    g("v_lshlrev_b32 v100, 9, v100")
    g(f"v_lshlrev_b32 v101, 5, v{vC}")
    g("v_add_u32 v100, v100, v101")
    g(f"v_and_b32 v101, 1, v{vG}")
    g("v_lshlrev_b32 v101, 4, v101")
    g("v_add_u32 v103, v100, v101")
    g(f"v_mul_u32_u24 v14, 1280, v{vG}")
    g("v_add_u32 v14, v14, v11")
    g(f"v_and_b32 v109, 31, v{vLane}")
    g("v_lshlrev_b32 v13, 4, v109")
    g(f"s_waitcnt vmcnt({5+NCLR})")
    g.stamp(4)
    for t in range(0, 8, 2):
        g(f"v_dot2c_f32_bf16 v91, v{X+t}, v90")
        g(f"v_dot2c_f32_bf16 v92, v{X+t}, v{X+t}")
        g(f"v_dot2c_f32_bf16 v93, v{X+t+1}, v90")
        g(f"v_dot2c_f32_bf16 v94, v{X+t+1}, v{X+t+1}")
    g(f"v_lshlrev_b32 v95, 16, v{X+8}")
    g(f"v_and_b32 v96, 0xffff0000, v{X+8}")
    g("s_nop 0")
    g("v_add_f32 v91, v91, v93")
    g("v_add_f32 v92, v92, v94")
    row_allreduce(g, [91, 92], "v_add_f32")
    multi_xswap(g, [91, 92], [93, 94], 16)
    multi_xswap(g, [91, 92], [93, 94], 32)
    g(f"v_mul_f32 v91, {fx(1/640)}, v91")
    g(f"v_mul_f32 v92, {fx(1/640)}, v92")
    g("v_fma_f32 v92, -v91, v91, v92")
    g("v_max_f32 v92, 0, v92")
    g("v_cvt_pk_bf16_f32 v91, v91, v92")
    g("v_and_b32 v92, 0xffff0000, v91")
    g("v_lshlrev_b32 v91, 16, v91")
    g(f"v_add_f32 v92, {fx(1e-5)}, v92")
    g("v_sub_f32 v95, v95, v91")
    g("v_sub_f32 v96, v96, v91")
    bf16r(g, 92, 92)
    g("v_cvt_pk_bf16_f32 v95, v95, v96")
    g("v_sqrt_f32 v92, v92")
    g("v_and_b32 v96, 0xffff0000, v95")
    g("v_lshlrev_b32 v95, 16, v95")
    bf16r(g, 92, 92)
    g("v_rcp_f32 v93, v92")
    g("s_nop 0")
    g("v_mul_f32 v97, v95, v93")
    g("v_mul_f32 v98, v96, v93")
    g("v_fma_f32 v99, -v97, v92, v95")
    g("v_fma_f32 v100, -v98, v92, v96")
    g("v_fma_f32 v97, v99, v93, v97")
    g("v_fma_f32 v98, v100, v93, v98")
    g("v_cvt_pk_bf16_f32 v99, v98, v98")
    g("v_cvt_pk_bf16_f32 v98, v97, v97")
    g("s_mov_b32 exec_hi, 0xff")
    g(f"ds_write_b64 v79, v[98:99] offset:{L_XN}")
    g("s_mov_b64 exec, -1")
    g("s_waitcnt lgkmcnt(0)")
    lds_arrive_wait(g, 0, 4)
    g(f"s_waitcnt vmcnt({NCLR})")
    g.stamp(14)
    DQ = 148; DH = 156
    diag_mfma(g, 102, 640, 16, 5, [WQ], [DQ], 108, MK, L_XN)
    g("s_lshl_b32 s52, s34, 11")
    g("v_add_u32 v100, s52, v103")
    g(f"ds_write_b128 v100, v[{DQ}:{DQ+3}] offset:{L_QPL}")
    g(f"ds_write_b128 v100, v[{DQ+4}:{DQ+7}] offset:{L_QPL+1024}")
    g("s_waitcnt vmcnt(0) lgkmcnt(0)")
    g("s_add_u32 s96, s96, 1")
    g(f"v_mov_b32 v{TAG}, s96")
    lds_arrive_wait(g, 1, 4)
    g.stamp(5)
    def sum4_lds(vaddr, R, base, stride=2048):
        for a2 in range(4):
            g(f"ds_read_b128 v[{R+4*a2}:{R+4*a2+3}], v{vaddr} offset:{base + a2*stride}")
        g("s_waitcnt lgkmcnt(0)")
        for k in range(4): g(f"v_add_f32 v{R+k}, v{R+k}, v{R+4+k}")
        for k in range(4): g(f"v_add_f32 v{R+8+k}, v{R+8+k}, v{R+12+k}")
        for k in range(4): g(f"v_add_f32 v{R+k}, v{R+k}, v{R+8+k}")
    g("s_lshl_b32 s52, s34, 9")
    g("v_add_u32 v15, s52, v13")
    g("s_lshl_b32 s100, s2, 12")
    g(f"s_add_u32 s100, s100, {WS_QP}")
    sum4_lds(15, 16, L_QPL)
    tagw(g, range(16, 20))
    g("s_mov_b32 exec_hi, 0")
    g("buffer_store_dwordx4 v[16:19], v15, s[36:39], s100 offen sc1")
    g("s_mov_b64 exec, -1")
    g.stamp(6)
    GQ = 112
    l_noq = g.label("noq")
    g("s_cmp_ge_u32 s34, 2")
    g(f"s_cbranch_scc1 {l_noq}")
    g("s_lshl_b32 s52, s30, 15")
    g("s_lshl_b32 s53, s32, 1")
    g("s_add_u32 s53, s53, s34")
    g("s_lshl_b32 s53, s53, 9")
    g("s_add_u32 s52, s52, s53")
    g(f"s_add_u32 s52, s52, {WS_QP}")
    g(f"s_sleep {C.sleepg}")
    g(f"v_lshlrev_b32 v{GQ+16}, 12, v{vLane}")
    g(f"v_add_u32 v{GQ+16}, 508, v{GQ+16}")
    g("s_mov_b64 exec, 0xff")
    def lightload(): g(f"buffer_load_dword v{GQ}, v{GQ+16}, s[36:39], s52 offen sc1")
    poll_tag(g, lightload, [GQ], "ql")
    g("s_mov_b64 exec, -1")
    g(f"v_lshrrev_b32 v{GQ+16}, 5, v{vLane}")
    g(f"v_lshlrev_b32 v{GQ+16}, 12, v{GQ+16}")
    g(f"v_add_u32 v{GQ+16}, v{GQ+16}, v13")
    def qloads():
        g("s_mov_b32 s53, s52")
        for t in range(4):
            g(f"buffer_load_dwordx4 v[{GQ+4*t}:{GQ+4*t+3}], v{GQ+16}, s[36:39], s53 offen sc1")
            if t < 3: g("s_add_u32 s53, s53, 8192")
    poll_tag(g, qloads, list(range(GQ, GQ+16)), "q", tmp=GQ+18)
    for k in range(4): g(f"v_add_f32 v{GQ+k}, v{GQ+k}, v{GQ+4+k}")
    for k in range(4): g(f"v_add_f32 v{GQ+8+k}, v{GQ+8+k}, v{GQ+12+k}")
    for k in range(4): g(f"v_add_f32 v{GQ+k}, v{GQ+k}, v{GQ+8+k}")
    multi_xswap(g, [GQ+k for k in range(4)], [GQ+4+k for k in range(4)], 32)
    g(f"v_cvt_pk_bf16_f32 v{GQ}, v{GQ}, v{GQ+1}")
    g(f"v_cvt_pk_bf16_f32 v{GQ+1}, v{GQ+2}, v{GQ+3}")
    g("v_lshrrev_b32 v17, 1, v13")
    g("s_lshl_b32 s52, s34, 8")
    g("v_add_u32 v17, s52, v17")
    g(f"ds_write_b64 v17, v[{GQ}:{GQ+1}] offset:{L_QL}")
    g("s_waitcnt lgkmcnt(0)")
    g(f"{l_noq}:")
    g.stamp(7)
    g("s_barrier")
    g.stamp(8)
    srd(g, 48, 16, 2211840)
    g(f"v_cmp_gt_u32 vcc, 7, v{vC}")
    g(f"v_mul_u32_u24 v78, 3456, v{vG}")
    g("v_add_u32 v78, v78, v11")
    g(f"v_mov_b32 v79, {OOB}")
    g("v_cndmask_b32 v78, v79, v78, vcc")
    g("s_mul_i32 s54, s35, 3456")
    g("s_mul_i32 s55, s30, 108")
    g("s_add_u32 s54, s54, s55")
    for j in range(5):
        g(f"buffer_load_dwordx4 v[{W1+4*j}:{W1+4*j+3}], v78, s[48:51], s54 offen nt")
        if j < 4: g("s_add_u32 s54, s54, 13824")
    g("s_waitcnt vmcnt(0)")
    diag_mfma(g, 102, 640, 16, 5, [W1], [DH], 108, MK, L_XN)
    g("s_lshl_b32 s52, s34, 11")
    g("v_add_u32 v100, s52, v103")
    g(f"ds_write_b128 v100, v[{DH}:{DH+3}] offset:{L_HPL}")
    g(f"ds_write_b128 v100, v[{DH+4}:{DH+7}] offset:{L_HPL+1024}")
    g("s_waitcnt lgkmcnt(0)")
    lds_arrive_wait(g, 4, 4)
    sum4_lds(15, 28, L_HPL)
    tagw(g, range(28, 32))
    g("s_lshl_b32 s52, s34, 8")
    g("v_add_u32 v100, s52, v13")
    g("s_add_u32 s52, s100, 2048")
    g("s_mov_b64 exec, 0xffff")
    g("buffer_store_dwordx4 v[28:31], v100, s[36:39], s52 offen sc1")
    g("s_mov_b64 exec, -1")
    WB = 16; SC = 48; DD = 80
    l_wo = g.label("wo"); l_b3 = g.label("b3")
    g("s_cmp_eq_u32 s99, 0")
    g(f"s_cbranch_scc1 {l_wo}")
    srd(g, 48, 18, 3456)
    g("s_mul_i32 s52, s30, 108")
    g(f"v_lshlrev_b32 v15, 3, v{vC}")
    g("v_add_u32 v15, s52, v15")
    g(f"buffer_load_dwordx2 v[{B1R}:{B1R+1}], v15, s[48:51], 0 offen")
    srd(g, 48, 20, 2211840)
    g("s_mul_i32 s52, s30, 54")
    g("s_lshl_b32 s53, s34, 4")
    g("s_add_u32 s52, s52, s53")
    g("s_mul_i32 s52, s52, 1280")
    g("s_lshl_b32 s54, s98, 8")
    g("s_add_u32 s52, s52, s54")
    g(f"v_add_u32 v78, s53, v{vG}")
    for jj in range(4):
        g(f"v_add_u32 v{88+jj}, s52, v14")
        g(f"v_cmp_gt_u32 vcc, {54-4*jj}, v78")
        g(f"v_mov_b32 v92, {OOB}")
        g("s_add_u32 s52, s52, 5120")
        g(f"v_cndmask_b32 v{88+jj}, v92, v{88+jj}, vcc")
    for jj in range(4):
        g(f"buffer_load_dwordx4 v[{WB+4*jj}:{WB+4*jj+3}], v{88+jj}, s[48:51], 0 offen nt")
    l_u1 = g.label("u1")
    g("s_cmp_lt_u32 s99, 2")
    g(f"s_cbranch_scc1 {l_u1}")
    for jj in range(4):
        g(f"buffer_load_dwordx4 v[{WB+16+4*jj}:{WB+16+4*jj+3}], v{88+jj}, s[48:51], 0 offen offset:256 nt")
    g(f"{l_u1}:")
    g("s_lshl_b32 s52, s30, 15")
    g("s_lshl_b32 s53, s34, 8")
    g("s_add_u32 s52, s52, s53")
    g(f"s_add_u32 s52, s52, {WS_QP+2048}")
    g(f"v_lshlrev_b32 v{GQ+16}, 12, v{vG}")
    g(f"v_add_u32 v{GQ+16}, v{GQ+16}, v11")
    def hloads():
        g(f"buffer_load_dwordx4 v[{GQ}:{GQ+3}], v{GQ+16}, s[36:39], s52 offen sc1")
        g("s_add_u32 s53, s52, 16384")
        g(f"buffer_load_dwordx4 v[{GQ+4}:{GQ+7}], v{GQ+16}, s[36:39], s53 offen sc1")
    poll_tag(g, hloads, list(range(GQ, GQ+8)), "h", tmp=GQ+18, sleep=4)
    for k in range(4): g(f"v_add_f32 v{GQ+k}, v{GQ+k}, v{GQ+4+k}")
    multi_xswap(g, [GQ+k for k in range(4)], [GQ+4+k for k in range(4)], 16)
    multi_xswap(g, [GQ+k for k in range(4)], [GQ+4+k for k in range(4)], 32)
    g(f"v_lshlrev_b32 v52, 16, v{B1R}\nv_and_b32 v53, 0xffff0000, v{B1R}\nv_lshlrev_b32 v54, 16, v{B1R+1}\nv_and_b32 v55, 0xffff0000, v{B1R+1}")
    for k in range(4): bf16r(g, GQ+k, GQ+k)
    for k in range(4): g(f"v_add_f32 v{GQ+k}, v{GQ+k}, v{52+k}")
    for k in range(4): bf16r(g, GQ+k, GQ+k)
    for k in range(4): g(f"v_max_f32 v{GQ+k}, 0, v{GQ+k}")
    for k in range(4): g(f"v_mul_f32 v{GQ+k}, v{GQ+k}, v{GQ+k}")
    for k in range(4): g(f"v_cvt_pk_bf16_f32 v{GQ+k}, v{GQ+k}, v{GQ+k}")
    g(f"v_lshlrev_b32 v52, 2, v{vC}")
    for k in range(4):
        g(f"v_cmp_gt_u32 vcc, {54-k}, v52")
        g("s_nop 1")
        g(f"v_cndmask_b32 v{GQ+k}, 0, v{GQ+k}, vcc")
    g("s_lshl_b32 s52, s34, 8")
    g("v_add_u32 v101, s52, v11")
    g("s_mov_b64 exec, 0xffff")
    g(f"ds_write_b128 v101, v[{GQ}:{GQ+3}] offset:{L_HL}")
    g("s_mov_b64 exec, -1")
    g("s_waitcnt lgkmcnt(0)")
    lds_arrive_wait(g, 2, 4)
    g(f"v_lshlrev_b32 v79, 8, v{vHalf}")
    g("v_lshlrev_b32 v78, 2, v78")
    g("v_add_u32 v78, v78, v79")
    g("s_waitcnt vmcnt(0)")
    DD2 = 92
    diag_mfma(g, 78, 512, 16, 4, [WB, WB+16], [DD, DD2], SC, MK, L_HL)
    g("s_lshl_b32 s52, s34, 11")
    g("v_add_u32 v100, s52, v103")
    g(f"ds_write_b128 v100, v[{DD}:{DD+3}] offset:{L_QPL}")
    g(f"ds_write_b128 v100, v[{DD+4}:{DD+7}] offset:{L_QPL+1024}")
    g(f"ds_write_b128 v100, v[{DD2}:{DD2+3}] offset:{L_HPL}")
    g(f"ds_write_b128 v100, v[{DD2+4}:{DD2+7}] offset:{L_HPL+1024}")
    g("s_waitcnt lgkmcnt(0)")
    lds_arrive_wait(g, 3, 4)
    g(f"v_lshrrev_b32 v108, 5, v{vLane}")
    g(f"v_mul_u32_u24 v110, {L_HPL-L_QPL}, v108")
    g(f"v_and_b32 v109, 31, v{vLane}")
    g("s_lshl_b32 s52, s34, 5")
    g("v_add_u32 v109, s52, v109")
    g("v_lshlrev_b32 v111, 2, v109")
    g("v_add_u32 v110, v110, v111")
    for a2 in range(4):
        for bb in range(4):
            g(f"ds_read_b32 v{112+4*a2+bb}, v110 offset:{L_QPL + a2*2048 + bb*512}")
    g("s_waitcnt lgkmcnt(0)")
    for k in range(4): g(f"v_add_f32 v{112+k}, v{112+k}, v{116+k}")
    for k in range(4): g(f"v_add_f32 v{120+k}, v{120+k}, v{124+k}")
    for k in range(4): g(f"v_add_f32 v{112+k}, v{112+k}, v{120+k}")
    tagw(g, range(112, 116))
    g("s_add_u32 s52, s56, s98")
    g("s_lshl_b32 s52, s52, 11")
    g(f"s_add_u32 s52, s52, {WS_YM}")
    g("v_lshlrev_b32 v110, 11, v108")
    g("v_lshlrev_b32 v111, 4, v109")
    g("v_add_u32 v110, v110, v111")
    g("s_cmp_lt_u32 s99, 2")
    g("s_cselect_b32 exec_hi, 0, -1")
    g("buffer_store_dwordx4 v[112:115], v110, s[36:39], s52 offen sc1")
    g("s_mov_b64 exec, -1")
    g("s_cmp_ge_u32 s62, 80")
    g(f"s_cbranch_scc1 {l_b3}")
    g("s_cmp_lg_u32 s34, 0")
    g(f"s_cbranch_scc1 {l_b3}")
    g("s_lshr_b32 s54, s62, 4")
    g("s_and_b32 s53, s62, 15")
    g("s_lshl_b32 s55, s54, 11")
    g("s_lshl_b32 s63, s53, 7")
    g("s_add_u32 s55, s55, s63")
    g("s_lshl_b32 s63, s62, 4")
    g(f"v_lshrrev_b32 v88, 3, v{vLane}")
    g(f"v_and_b32 v89, 7, v{vLane}")
    g("v_lshlrev_b32 v90, 4, v89")
    g("v_lshlrev_b32 v91, 1, v89")
    g("v_add_u32 v91, s63, v91")
    srd(g, 48, 22, 1280)
    g("buffer_load_ushort v94, v91, s[48:51], 0 offen")
    for k in range(4):
        g(f"buffer_load_ushort v{80+k}, v91, s[40:43], 0 offen offset:{1280*k}")
    g("v_mul_u32_u24 v93, 10240, v88")
    g("v_add_u32 v93, v93, v90")
    YR = 16
    def recloads(base):
        def f():
            g(f"s_add_u32 s52, s55, {base}")
            for t in range(4):
                g(f"buffer_load_dwordx4 v[{YR+4*t}:{YR+4*t+3}], v93, s[36:39], s52 offen sc1")
                if t < 3: g("s_add_u32 s52, s52, 81920")
        return f
    def red8(R, T):
        for t in range(1, 4):
            for k in range(4): g(f"v_add_f32 v{R+k}, v{R+k}, v{R+4*t+k}")
        g("s_nop 1")
        for k in range(4): g(f"v_add_f32_dpp v{R+k}, v{R+k}, v{R+k} row_ror:8 {DPPF}")
        multi_xswap(g, [R+k for k in range(4)], [T+k for k in range(4)], 16)
        multi_xswap(g, [R+k for k in range(4)], [T+k for k in range(4)], 32)
    poll_tag(g, recloads(WS_YM), list(range(YR, YR+16)), "ym", sleep=8)
    red8(YR, YR+4)
    for k in range(4): g(f"v_lshlrev_b32 v{80+k}, 16, v{80+k}")
    g("v_lshlrev_b32 v94, 16, v94")
    for k in range(4): bf16r(g, YR+k, YR+k)
    for k in range(4): g(f"v_add_f32 v{84+k}, v{YR+k}, v94")
    for k in range(4): bf16r(g, 84+k, 84+k)
    g(f"s_branch {l_b3}")
    g(f"{l_wo}:")
    srd(g, 48, 12, 5242880)
    g("s_lshl_b32 s52, s30, 7")
    g("s_mul_i32 s52, s52, 1280")
    g("s_lshl_b32 s53, s97, 8")
    g("s_add_u32 s52, s52, s53")
    g("s_lshl_b32 s53, s34, 6")
    g("s_add_u32 s52, s52, s53")
    g(f"v_lshrrev_b32 v78, 2, v{vLane}")
    g("v_mul_u32_u24 v78, 1280, v78")
    g(f"v_and_b32 v79, 3, v{vLane}")
    g("v_lshlrev_b32 v79, 4, v79")
    g("v_add_u32 v78, v78, v79")
    for r in range(8):
        g(f"buffer_load_dwordx4 v[{WB+4*r}:{WB+4*r+3}], v78, s[48:51], s52 offen nt")
        if r < 7: g(f"s_add_u32 s52, s52, {16*1280}")
    g("s_lshl_b32 s52, s34, 13")
    g("v_add_u32 v79, s52, v8")
    g("v_mov_b32 v88, 0\nv_mov_b32 v89, 0\nv_mov_b32 v90, 0\nv_mov_b32 v91, 0")
    g("s_mov_b64 exec, 0xffff")
    g(f"ds_write_b128 v8, v[88:91] offset:{L_OL+1024}")
    g("s_mov_b64 exec, -1")
    for r in range(8):
        g(f"s_waitcnt vmcnt({7-r})")
        g(f"ds_write_b128 v79, v[{WB+4*r}:{WB+4*r+3}] offset:{L_WT + r*1024}")
    g(f"v_lshlrev_b32 v78, 9, v{vG}")
    g(f"v_lshlrev_b32 v79, 1, v{vC}")
    g("v_add_u32 v78, v78, v79")
    g("v_add_u32 v78, s52, v78")
    g("s_waitcnt lgkmcnt(0)")
    for s_ in range(4):
        for t in range(2):
            for q in range(4):
                r = WB + (s_*2+t)*4 + q
                off = L_WT + s_*2048 + q*128 + t*32
                g(f"ds_read_u16 v{r}, v78 offset:{off}")
                g(f"ds_read_u16 v{112+t*4+q}, v78 offset:{off+64}")
        g("s_waitcnt lgkmcnt(0)")
        for t in range(2):
            for q in range(4):
                r = WB + (s_*2+t)*4 + q
                g(f"v_lshl_or_b32 v{r}, v{112+t*4+q}, 16, v{r}")
    g(f"v_lshlrev_b32 v78, 8, v{vC}")
    g(f"v_lshlrev_b32 v79, 4, v{vG}")
    g("v_add_u32 v78, v78, v79")
    g(f"v_cmp_gt_u32 vcc, 4, v{vC}")
    g("v_mov_b32 v79, 1024")
    g("s_nop 0")
    g("v_cndmask_b32 v78, v79, v78, vcc")
    g(f"{l_b3}:")
    g.stamp(9)
    g("s_barrier")
    g.stamp(10)
    l_t1 = g.label("t1")
    g("s_cmp_lg_u32 s34, 0")
    g(f"s_cbranch_scc1 {l_t1}")
    g(f"v_lshrrev_b32 v108, 5, v{vLane}")
    g("v_lshlrev_b32 v110, 11, v108")
    g("v_add_u32 v110, v110, v13")
    AC = 112; STt = 144
    g("v_lshlrev_b32 v160, 5, v108")
    for s_ in range(2):
        for r in range(0, 4, 2):
            p = s_*4+r
            g(f"ds_read_b128 v[{STt+2*p}:{STt+2*p+3}], v160 offset:{L_ST + s_*64 + r*8}")
    for s_ in range(2):
        for r in range(4):
            p = s_*4+r
            g(f"ds_read_b128 v[{AC+4*p}:{AC+4*p+3}], v110 offset:{L_SP + s_*4096 + r*512}")
    g("s_waitcnt lgkmcnt(8)")
    g(f"v_max3_f32 v161, v{STt}, v{STt+2}, v{STt+4}")
    g(f"v_max3_f32 v161, v161, v{STt+6}, v{STt+8}")
    g(f"v_max3_f32 v161, v161, v{STt+10}, v{STt+12}")
    g(f"v_max_f32 v161, v161, v{STt+14}")
    for p in range(8): g(f"v_sub_f32 v{STt+2*p}, v{STt+2*p}, v161")
    for p in range(8): g(f"v_mul_f32 v{STt+2*p}, {fx(LOG2E)}, v{STt+2*p}")
    for p in range(8): g(f"v_exp_f32 v{STt+2*p}, v{STt+2*p}")
    g("s_nop 0")
    g(f"v_mul_f32 v162, v{STt}, v{STt+1}")
    for p in range(1, 8): g(f"v_fmac_f32 v162, v{STt+2*p}, v{STt+2*p+1}")
    g("s_waitcnt lgkmcnt(0)")
    for k in range(4): g(f"v_mul_f32 v{164+k}, v{AC+k}, v{STt}")
    for p in range(1, 8):
        for k in range(4): g(f"v_fmac_f32 v{164+k}, v{AC+4*p+k}, v{STt+2*p}")
    tagw(g, range(164, 168))
    g("v_lshlrev_b32 v163, 12, v108")
    g("v_add_u32 v163, v163, v13")
    g("buffer_store_dwordx4 v[164:167], v163, s[36:39], s57 offen sc1")
    g("v_mov_b32 v168, v161\nv_mov_b32 v169, v162")
    tagw(g, [168, 169])
    g("s_mov_b32 exec_lo, 1\ns_mov_b32 exec_hi, 1")
    g("buffer_store_dwordx2 v[168:169], v163, s[36:39], s57 offen offset:512 sc1")
    g("s_mov_b64 exec, -1")
    g.stamp(11)
    g(f"{l_t1}:")
    l_notunit = g.label("notunit")
    g("s_cmp_ge_u32 s97, 5")
    g(f"s_cbranch_scc1 {l_notunit}")
    g(f"v_lshrrev_b32 v108, 5, v{vLane}")
    g("v_lshlrev_b32 v110, 10, v108")
    g("v_add_u32 v111, v110, v13")
    g("s_lshl_b32 s52, s30, 2")
    g("s_add_u32 s52, s52, s34")
    g("s_lshl_b32 s52, s52, 12")
    g(f"s_add_u32 s59, s52, {WS_P1}")
    O0, O1, S0, S1 = 112, 116, 120, 122
    def h1loads():
        g(f"buffer_load_dwordx4 v[{O0}:{O0+3}], v111, s[36:39], s59 offen sc1")
        g(f"buffer_load_dwordx4 v[{O1}:{O1+3}], v111, s[36:39], s59 offen offset:2048 sc1")
        g(f"buffer_load_dwordx2 v[{S0}:{S0+1}], v110, s[36:39], s59 offen offset:512 sc1")
        g(f"buffer_load_dwordx2 v[{S1}:{S1+1}], v110, s[36:39], s59 offen offset:2560 sc1")
    poll_tag(g, h1loads, list(range(O0, O0+12)), "h1", sleep=0)
    g.stamp(12)
    g(f"v_and_b32 v{S0}, 0xffffff00, v{S0}")
    g(f"v_and_b32 v{S1}, 0xffffff00, v{S1}")
    g(f"v_max_f32 v124, v{S0}, v{S1}")
    multi_xswap(g, [124], [125], 32, "v_max_f32")
    g(f"v_sub_f32 v{S0}, v{S0}, v124")
    g(f"v_sub_f32 v{S1}, v{S1}, v124")
    g(f"v_mul_f32 v{S0}, {fx(LOG2E)}, v{S0}")
    g(f"v_mul_f32 v{S1}, {fx(LOG2E)}, v{S1}")
    g(f"v_exp_f32 v{S0}, v{S0}")
    g(f"v_exp_f32 v{S1}, v{S1}")
    g("s_nop 0")
    g(f"v_mul_f32 v128, v{S0}, v{S0+1}")
    g(f"v_fmac_f32 v128, v{S1}, v{S1+1}")
    for k in range(4): g(f"v_mul_f32 v{129+k}, v{O0+k}, v{S0}")
    for k in range(4): g(f"v_fmac_f32 v{129+k}, v{O1+k}, v{S1}")
    multi_xswap(g, [128+k for k in range(5)], [134+k for k in range(5)], 32)
    g("v_rcp_f32 v133, v128")
    g("s_nop 0")
    for k in range(4): g(f"v_mul_f32 v{134+k}, v{129+k}, v133")
    for k in range(4): g(f"v_fma_f32 v{138+k}, -v{134+k}, v128, v{129+k}")
    for k in range(4): g(f"v_fma_f32 v{134+k}, v{138+k}, v133, v{134+k}")
    g("v_cvt_pk_bf16_f32 v140, v134, v135")
    g("v_cvt_pk_bf16_f32 v141, v136, v137")
    g("v_lshrrev_b32 v134, 1, v13")
    g("s_lshl_b32 s52, s34, 8")
    g("v_add_u32 v134, s52, v134")
    g(f"ds_write_b64 v134, v[140:141] offset:{L_OL}")
    g("s_add_u32 s52, s56, s97")
    g("s_lshl_b32 s52, s52, 11")
    g("s_lshl_b32 s53, s34, 9")
    g("s_add_u32 s52, s52, s53")
    g(f"s_add_u32 s52, s52, {WS_Y}")
    g("s_waitcnt lgkmcnt(0)")
    g("s_barrier")
    for s_ in range(4):
        g(f"ds_read_b128 v[{112+4*s_}:{112+4*s_+3}], v78 offset:{L_OL + s_*64}")
    for s_ in range(4):
        g(f"s_waitcnt lgkmcnt({3-s_})")
        for t in range(2):
            c = "0" if s_ == 0 else f"v[{DD+4*t}:{DD+4*t+3}]"
            B = WB + (s_*2+t)*4
            g(f"v_mfma_f32_16x16x32_bf16 v[{DD+4*t}:{DD+4*t+3}], v[{112+4*s_}:{112+4*s_+3}], v[{B}:{B+3}], {c}")
    g("s_nop 7")
    tagw(g, range(DD, DD+8))
    g("s_mov_b64 exec, 0xffff")
    g(f"buffer_store_dwordx4 v[{DD}:{DD+3}], v11, s[36:39], s52 offen sc1")
    g(f"buffer_store_dwordx4 v[{DD+4}:{DD+7}], v11, s[36:39], s52 offen offset:256 sc1")
    g("s_mov_b64 exec, -1")
    g.stamp(13)
    if C.stamps: stamp_store(g, "s3", range(4, 15), only_wave=4)
    g("s_endpgm")
    g(f"{l_notunit}:")
    g("s_cmp_lg_u32 s34, 0")
    g("s_cbranch_scc1 L_end")
    l_st = g.label("stonly")
    g("s_cmp_ge_u32 s62, 80")
    g(f"s_cbranch_scc1 {l_st}")
    poll_tag(g, recloads(WS_Y), list(range(YR, YR+16)), "y", sleep=0)
    g.stamp(12)
    red8(YR, YR+4)
    for k in range(4): bf16r(g, YR+k, YR+k)
    for k in range(4): g(f"v_add_f32 v{YR+k}, v{YR+k}, v{80+k}")
    for k in range(4): bf16r(g, YR+k, YR+k)
    for k in range(4): g(f"v_add_f32 v{YR+k}, v{YR+k}, v{84+k}")
    for k in range(4): g(f"v_cvt_pk_bf16_f32 v{YR+k}, v{YR+k}, v{YR+k}")
    srd(g, 48, 24, 5120)
    g("s_mov_b64 exec, 0xff")
    for k in range(4):
        g(f"buffer_store_short v{YR+k}, v91, s[48:51], 0 offen offset:{1280*k}")
    l_ep = g.label("ep")
    g("s_cmp_lg_u32 s62, 0")
    g(f"s_cbranch_scc1 {l_ep}")
    g("s_mov_b64 exec, 1")
    g(f"v_mov_b32 v92, {WS_EPOCH}")
    g(f"buffer_store_dword v{TAG}, v92, s[36:39], 0 offen sc1")
    g(f"{l_ep}:")
    g("s_mov_b64 exec, -1")
    g.stamp(13)
    g(f"{l_st}:")
    if C.stamps: stamp_store(g, "s3", range(4, 15), only_wave=4)
    g("s_endpgm")

def gen():
    g = G()
    g(f"{KN}:")
    g("s_cmp_ge_u32 s2, 256")
    g("s_cbranch_scc1 L_end")
    g.stamp(0)
    g("s_load_dwordx16 s[4:19], s[0:1], 0")
    g("s_load_dwordx8 s[20:27], s[0:1], 64")
    g("s_load_dwordx2 s[28:29], s[0:1], 96")
    g("v_lshrrev_b32 v1, 6, v0")
    g("s_lshr_b32 s30, s2, 3")
    g("v_readfirstlane_b32 s3, v1")
    g("s_and_b32 s31, s2, 7")
    g("v_and_b32 v1, 63, v0")
    if C.qmap == 0:
        g("s_lshr_b32 s32, s31, 2")
        g("s_and_b32 s33, s31, 3")
    elif C.qmap == 1:
        g("s_bfe_u32 s32, s31, 0x10001")
        g("s_lshr_b32 s33, s31, 2")
        g("s_lshl_b32 s33, s33, 1")
        g("s_and_b32 s34, s31, 1")
        g("s_or_b32 s33, s33, s34")
    elif C.qmap == 2:
        g("s_lshr_b32 s32, s31, 1")
        g("s_xor_b32 s32, s32, s31")
        g("s_and_b32 s32, s32, 1")
        g("s_lshr_b32 s33, s31, 1")

    g("s_cmp_ge_u32 s3, 4")
    g("s_cbranch_scc1 L_aux")
    nv = streaming(g)
    g("L_aux:")
    aux(g)
    g("L_end:")
    g("s_endpgm")
    return g.text(), max(nv, 176)

HEADER = open("cdna_kernels/" + NAME + ".s.ref").read().split("; Override launch geometry")[0]

def build(path):
    body, nv = gen()
    nv = (nv + 3)//4*4
    assert nv <= 256
    txt = HEADER
    txt += "; Override launch geometry by editing the next line (default: block=256,\n"
    txt += f"; @launch grid=(256,1,1) block=(512,1,1) lds={LDS_BYTES}\n"
    txt += '.amdgcn_target "amdgcn-amd-amdhsa--gfx950"\n.text\n'
    txt += f".globl {KN}\n.p2align 8\n.type {KN},@function\n"
    txt += body
    txt += f""".section .rodata,"a"
.p2align 6
.amdhsa_kernel {KN}
  .amdhsa_next_free_vgpr {nv}
  .amdhsa_next_free_sgpr 102
  .amdhsa_accum_offset {nv}
  .amdhsa_group_segment_fixed_size 0
  .amdhsa_kernarg_size 104
  .amdhsa_user_sgpr_count 2
  .amdhsa_user_sgpr_kernarg_segment_ptr 1
  .amdhsa_system_sgpr_workgroup_id_x 1
.end_amdhsa_kernel
"""
    open(path, "w").write(txt)

if __name__ == "__main__":
    ap = argparse.ArgumentParser()
    ap.add_argument("-o", default="k.s")
    ap.add_argument("--stamps", action="store_true")
    ap.add_argument("--win", type=int, default=8)
    ap.add_argument("--sleepg", type=int, default=16)
    ap.add_argument("--kpol", default="nt")
    ap.add_argument("--vpol", default="nt")
    ap.add_argument("--nokx", action="store_true")
    ap.add_argument("--r4", type=int, default=0)
    ap.add_argument("--r2", type=int, default=0)
    ap.add_argument("--qmap", type=int, default=2)
    a = ap.parse_args()
    C.qmap = a.qmap
    C.stamps = a.stamps; C.win = a.win; C.sleepg = a.sleepg
    C.kpol = a.kpol.replace("_"," "); C.vpol = a.vpol.replace("_"," ")
    C.kx = not a.nokx; C.r4 = a.r4; C.r2 = a.r2
    build(a.o)
```

```python
import sys, argparse, struct

NAME = "parallel_sum__gqa_block_cached__dense_activation_squared_relu__decode"
KN = NAME + "_kernel"

WS_TICK = 0x000000
WS_EPOCH= 0x0F0000
WS_QP   = 0x100000
WS_P1   = 0x300000
WS_Y    = 0x400000
WS_YM   = 0x500000
WS_STAMP= 0x800000
WS_SIZE = 0x1000000
L_XN  = 0
L_QPL = 2048
L_HPL = 10240
L_QL  = 18432
L_HL  = 18944
L_CNT = 19968
L_SP  = 20480
L_ST  = 28672
L_OL  = 28928
L_WT  = 30720
LDS_BYTES = 63488

LOG2E = 1.4426950408889634
OOB = "0x7f000000"

class Cfg:
    spin_max = 200000
    win = 8
    sleepg = 16
    stamps = False
    dbgst = False
    qmap = 2
    kpol = 'nt'; vpol = 'nt'
    kx = True
    r4 = 64; r2 = 24
C = Cfg()

class G:
    def __init__(s):
        s.o = []; s.nl = 0
    def __call__(s, t):
        for line in t.strip("\n").split("\n"):
            line = line.strip()
            s.o.append(line if line.endswith(":") else "    " + line)
    def label(s, base):
        s.nl += 1
        return f"L_{base}_{s.nl}"
    def stamp(s, k):
        if C.stamps: s(f"s_memrealtime s[{64+2*k}:{65+2*k}]")
    def dstamp(s, k, vtmp, op="umax"):
        if not C.dbgst: return
        s("s_memrealtime s[76:77]")
        s("s_mov_b64 s[78:79], exec")
        s("s_waitcnt lgkmcnt(0)")
        s("s_mov_b64 exec, 1")
        s(f"v_mov_b32 v{vtmp}, {4*k}")
        val = "s76" if op == "umax" else None
        if op == "umax":
            s(f"v_mov_b32 v{vtmp+1}, s76")
        else:
            s("s_not_b32 s76, s76")
            s(f"v_mov_b32 v{vtmp+1}, s76")
        s(f"global_atomic_umax v{vtmp}, v{vtmp+1}, s[26:27] sc1")
        s("s_mov_b64 exec, s[78:79]")
    def text(s): return "\n".join(s.o) + "\n"

def f2u(x): return struct.unpack("<I", struct.pack("<f", x))[0]
def fx(x): return f"0x{f2u(x):08x}"

def bf16r(g, dst, src):
    g(f"v_cvt_pk_bf16_f32 v{dst}, v{src}, v{src}")
    g(f"v_and_b32 v{dst}, 0xffff0000, v{dst}")

def multi_xswap(g, regs, tmps, which, op="v_add_f32"):
    for v, t in zip(regs, tmps): g(f"v_mov_b32 v{t}, v{v}")
    g("s_nop 1")
    for v, t in zip(regs, tmps): g(f"v_permlane{which}_swap_b32 v{v}, v{t}")
    g("s_nop 1")
    for v, t in zip(regs, tmps): g(f"{op} v{v}, v{v}, v{t}")

DPPF = "row_mask:0xf bank_mask:0xf"
def row_allreduce(g, regs, op):
    for ctrl in ("row_ror:8", "row_half_mirror", "quad_perm:[3,2,1,0]", "quad_perm:[1,0,3,2]"):
        if len(regs) < 3: g("s_nop 1")
        for v in regs: g(f"{op}_dpp v{v}, v{v}, v{v} {ctrl} {DPPF}")

def srd(g, s, lo, size):
    g(f"s_mov_b32 s{s}, s{lo}\ns_mov_b32 s{s+1}, s{lo+1}\ns_mov_b32 s{s+2}, {size}\ns_mov_b32 s{s+3}, 0x20000")

def stamp_store(g, swave, ks, only_wave):
    if C.dbgst:
        l = g.label("st")
        g("s_waitcnt lgkmcnt(0)")
        g(f"s_cmp_eq_u32 {swave}, {only_wave}")
        g(f"s_cbranch_scc0 {l}")
        g("s_mov_b64 exec, 1")
        for k in ks:
            l2 = g.label("sk")
            g(f"s_cmp_eq_u32 s{64+2*k}, 0")
            g(f"s_cbranch_scc1 {l2}")
            g(f"v_mov_b32 v40, {4*k}")
            g(f"v_mov_b32 v41, s{64+2*k}")
            g("global_atomic_umax v40, v41, s[26:27] sc1")
            if k == 0:
                g(f"s_not_b32 s60, s{64+2*k}")
                g(f"v_mov_b32 v42, s60")
                g(f"global_atomic_umax v40, v42, s[26:27] offset:60 sc1")
            g("s_nop 1")
            g(f"{l2}:")
        g(f"{l}:")
        return
    l = g.label("st")
    g("s_waitcnt lgkmcnt(0)")
    g(f"s_cmp_eq_u32 {swave}, {only_wave}")
    g(f"s_cbranch_scc0 {l}")
    g("s_lshl_b32 s60, s2, 6")
    g(f"s_add_u32 s60, s60, {WS_STAMP}")
    g("s_add_u32 s62, s28, s60\ns_addc_u32 s63, s29, 0")
    g("s_mov_b64 exec, 1")
    g("v_mov_b32 v40, 0")
    for k in ks:
        g(f"v_mov_b32 v41, s{64+2*k}")
        g(f"global_store_dword v40, v41, s[62:63] offset:{4*k}")
        g("s_nop 1")
    g("s_waitcnt vmcnt(0)")
    g(f"{l}:")

TAG = 170
def tagw(g, regs):
    for r in regs: g(f"v_bfi_b32 v{r}, s95, v{TAG}, v{r}")

def spin_tail(g, lp, dn, sleep):
    g("s_add_u32 s58, s58, 1")
    g(f"s_cbranch_vccz {dn}")
    g(f"s_cmp_lt_u32 s58, {C.spin_max}")
    g(f"s_cbranch_scc0 {dn}")
    if sleep: g(f"s_sleep {sleep}")
    g(f"s_branch {lp}")
    g(f"{dn}:")

def tagcheck(g, regs, t0, t1):
    g(f"v_xor_b32 v{t0}, v{regs[0]}, v{TAG}")
    rest = regs[1:]
    while rest:
        if len(rest) >= 2:
            g(f"v_xor_b32 v{t1}, v{rest[0]}, v{TAG}")
            g(f"v_xor_b32 v{t1+1}, v{rest[1]}, v{TAG}")
            g(f"v_or3_b32 v{t0}, v{t0}, v{t1}, v{t1+1}")
            rest = rest[2:]
        else:
            g(f"v_xor_b32 v{t1}, v{rest[0]}, v{TAG}")
            g(f"v_or_b32 v{t0}, v{t0}, v{t1}")
            rest = rest[1:]
    g(f"v_and_b32 v{t0}, 0xff, v{t0}")
    g(f"v_cmp_ne_u32 vcc, 0, v{t0}")

def poll_tag(g, loads, regs, name, tmp=126, sleep=1):
    lp = g.label("poll"+name); dn = g.label("pdone"+name)
    g("s_mov_b32 s58, 0")
    g(f"{lp}:")
    loads()
    g("s_waitcnt vmcnt(0)")
    tagcheck(g, regs, tmp, tmp+1)
    spin_tail(g, lp, dn, sleep)

def lds_arrive_wait(g, idx, n):
    lp = g.label("lw")
    g(f"v_mov_b32 v173, {L_CNT + 4*idx}")
    g("v_mov_b32 v174, 1")
    g("s_mov_b64 exec, 1")
    g("ds_add_u32 v173, v174")
    g(f"{lp}:")
    g("ds_read_b32 v174, v173")
    g("s_waitcnt lgkmcnt(0)")
    g("v_readfirstlane_b32 s59, v174")
    g(f"s_cmp_lt_u32 s59, {n}")
    g(f"s_cbranch_scc1 {lp}")
    g("s_mov_b64 exec, -1")

def diag_mfma(g, vAaddr, imm_bp, imm_j, nj, Ws, Ds, vA, masks, lds_base):
    raw = vA
    for j in range(nj):
        for bp in range(2):
            g(f"ds_read_b32 v{raw+2*j+bp}, v{vAaddr} offset:{lds_base + bp*imm_bp + j*imm_j}")
    op = vA + 2*nj
    n = 0
    for j in range(nj):
        for bp in range(2):
            g(f"s_waitcnt lgkmcnt({min(15, 2*nj-1-n)})")
            o = op + 4*(n % 2)
            for q in range(4): g(f"v_and_b32 v{o+q}, v{masks+q}, v{raw+2*j+bp}")
            g("s_nop 1")
            for W, D in zip(Ws, Ds):
                c = "0" if j == 0 else f"v[{D+4*bp}:{D+4*bp+3}]"
                g(f"v_mfma_f32_16x16x32_bf16 v[{D+4*bp}:{D+4*bp+3}], v[{o}:{o+3}], v[{W+4*j}:{W+4*j+3}], {c}")
            n += 1
    g("s_nop 7")

def streaming(g):
    LPT = 16; UB = 4096; NU = 512; NW = 8
    vL16, vTk, vZero, vN, vM, vL = 1, 3, 4, 5, 6, 7
    vAcc = 8; vQ = 16; vS = 20; vU = 36; vK = 48; vV = 112; vKx = 176
    vOffA = 44; vC = 2; vNinf = 240 if C.kx else 176
    vOffB = vNinf + 1
    NSTAT = 3 if C.kx else 2
    g("s_and_b32 s34, s3, 1")
    g("s_lshl_b32 s35, s32, 1")
    g("s_add_u32 s35, s35, s34")
    g("s_lshl_b32 s52, s35, 5")
    g("s_add_u32 s52, s52, s30")
    g("s_lshr_b32 s53, s3, 1")
    g("s_lshl_b32 s54, s33, 1")
    g("s_add_u32 s53, s53, s54")
    g("s_lshl_b32 s54, s52, 21")
    g(f"v_and_b32 v{vC}, 15, v1")
    g(f"v_lshlrev_b32 v{vL16}, 4, v1")
    g("s_lshl_b32 s47, s53, 14")
    def setoff(base, sreg_or_none, add=0, frm=None):
        if frm is None:
            g(f"v_add_u32 v{base}, {sreg_or_none}, v{vL16}")
        else:
            g(f"v_add_u32 v{base}, {add}, v{frm}")
        for k in range(1, 4): g(f"v_add_u32 v{base+k}, {4096*k}, v{base}")
    setoff(vOffA, "s47")
    setoff(vOffB, None, NW*4*UB, vOffA)
    g("s_mov_b32 s43, 0xffff0000")
    g("s_mov_b32 s34, 0x200000\ns_mov_b32 s35, 0x20000\ns_mov_b32 s38, 0x200000\ns_mov_b32 s39, 0x20000")
    g("s_lshl_b32 s55, s52, 8")
    lz = g.label("z")
    g("s_cmp_lg_u32 s3, 0")
    g(f"s_cbranch_scc1 {lz}")
    g(f"v_mov_b32 v36, {L_CNT}")
    for k in range(4): g(f"v_mov_b32 v{48+k}, 0")
    g("ds_write_b128 v36, v[48:51]")
    g("ds_write_b128 v36, v[48:51] offset:16")
    g(f"{lz}:")
    g("s_waitcnt lgkmcnt(0)")
    g("s_add_u32 s32, s6, s54\ns_addc_u32 s33, s7, 0")
    g("s_add_u32 s36, s8, s54\ns_addc_u32 s37, s9, 0")
    g("s_add_u32 s44, s28, s55\ns_addc_u32 s45, s29, 0")
    if WS_TICK: g(f"s_add_u32 s44, s44, {WS_TICK}\ns_addc_u32 s45, s45, 0")
    g("s_barrier")
    def kload(j, base, off): g(f"buffer_load_dwordx4 v[{base+4*j}:{base+4*j+3}], v{off+j//4}, s[32:35], 0 offen offset:{(j%4)*1024} {C.kpol}")
    def vload(j, off): g(f"buffer_load_dwordx4 v[{vV+4*j}:{vV+4*j+3}], v{off+j//4}, s[36:39], 0 offen offset:{(j%4)*1024} {C.vpol}")
    npre = 3*LPT if C.kx else 2*LPT
    for n in range(npre):
        if n >= C.win: g(f"s_waitcnt vmcnt({C.win-1})")
        if n < LPT: kload(n, vK, vOffA)
        elif n < 2*LPT: vload(n-LPT, vOffA)
        else: kload(n-2*LPT, vKx, vOffB)
    g.stamp(1)
    g(f"v_mov_b32 v{vZero}, 0\nv_mov_b32 v{vN}, 4\nv_mov_b32 v{vM}, 0xff800000\nv_mov_b32 v{vL}, 0")
    g(f"v_mov_b32 v{vNinf}, 0xff800000")
    for k in range(8): g(f"v_mov_b32 v{vAcc+k}, 0")
    g("s_mov_b32 s48, 0xcccccccc\ns_mov_b32 s49, 0xcccccccc\ns_mov_b32 s50, 0xaaaaaaaa\ns_mov_b32 s51, 0xaaaaaaaa")
    g(f"v_and_b32 v36, 0xf0, v{vL16}")
    g("s_and_b32 s54, s3, 1")
    g("s_lshl_b32 s54, s54, 8")
    g("v_add_u32 v36, s54, v36")
    g("s_mov_b32 s60, 16")
    g("s_mov_b32 s61, 4")
    g("s_barrier")
    g(f"ds_read_b128 v[{vQ}:{vQ+3}], v36 offset:{L_QL}")
    g("s_waitcnt lgkmcnt(0)")
    g.stamp(2)

    def atomic():
        g("s_mov_b64 exec, 1")
        g(f"global_atomic_add v{vTk}, v{vZero}, v{vN}, s[44:45] sc0 sc1")
        g("s_mov_b64 exec, -1")
    def kphase(kreg, wait, refill):
        for j in range(LPT):
            w = wait(j)
            if w is not None: g(f"s_waitcnt vmcnt({w})")
            k = kreg + 4*j
            g(f"v_dot2_f32_bf16 v{vS+j}, v{k}, v{vQ}, 0")
            for t in range(1, 4): g(f"v_dot2_f32_bf16 v{vS+j}, v{k+t}, v{vQ+t}, v{vS+j}")
            if refill is not None: kload(j, kreg, refill)
        if refill is None: g("s_nop 1")
    vP = vS+3
    def softmax(mask):
        for j in range(8):
            g(f"v_add_f32_dpp v{vS+j}, v{vS+j}, v{vS+j} row_ror:8 row_mask:0xf bank_mask:0x3")
            g(f"v_add_f32_dpp v{vS+j}, v{vS+j+8}, v{vS+j+8} row_ror:8 row_mask:0xf bank_mask:0xc")
        for j in range(4):
            g(f"v_add_f32_dpp v{vS+j}, v{vS+j}, v{vS+j} row_half_mirror row_mask:0xf bank_mask:0x5")
            g(f"v_add_f32_dpp v{vS+j}, v{vS+j+4}, v{vS+j+4} row_half_mirror row_mask:0xf bank_mask:0xa")
        u0, w0, u1, w1 = vU, vU+1, vU+2, vU+3
        g(f"v_add_f32_dpp v{u0}, v{vS+0}, v{vS+0} quad_perm:[3,2,1,0] {DPPF}")
        g(f"v_add_f32_dpp v{w0}, v{vS+2}, v{vS+2} quad_perm:[3,2,1,0] {DPPF}")
        g(f"v_add_f32_dpp v{u1}, v{vS+1}, v{vS+1} quad_perm:[3,2,1,0] {DPPF}")
        g(f"v_add_f32_dpp v{w1}, v{vS+3}, v{vS+3} quad_perm:[3,2,1,0] {DPPF}")
        if mask: g(f"v_cmp_gt_u32 vcc, s60, v{vC}")
        g(f"v_cndmask_b32 v{vS+0}, v{u0}, v{w0}, s[48:49]")
        g(f"v_cndmask_b32 v{vS+1}, v{u1}, v{w1}, s[48:49]")
        g("s_nop 1")
        g(f"v_add_f32_dpp v{u0}, v{vS+0}, v{vS+0} quad_perm:[1,0,3,2] {DPPF}")
        g(f"v_add_f32_dpp v{w0}, v{vS+1}, v{vS+1} quad_perm:[1,0,3,2] {DPPF}")
        sc = vS
        g(f"v_cndmask_b32 v{sc}, v{u0}, v{w0}, s[50:51]")
        g(f"v_cvt_pk_bf16_f32 v{sc}, v{sc}, v{sc}")
        g(f"v_and_b32 v{sc}, s43, v{sc}")
        g(f"v_mul_f32 v{sc}, {fx(128**-0.5)}, v{sc}")
        g(f"v_cvt_pk_bf16_f32 v{sc}, v{sc}, v{sc}")
        g(f"v_and_b32 v{sc}, s43, v{sc}")
        if mask: g(f"v_cndmask_b32 v{sc}, v{vNinf}, v{sc}, vcc")
        mx = vS+1; al = vS+2
        g(f"v_max_f32 v{mx}, v{sc}, v{vM}")
        for ctrl in ("row_ror:8", "row_half_mirror", "quad_perm:[3,2,1,0]", "quad_perm:[1,0,3,2]"):
            g("s_nop 1")
            g(f"v_max_f32_dpp v{mx}, v{mx}, v{mx} {ctrl} {DPPF}")
        g(f"v_sub_f32 v{al}, v{vM}, v{mx}")
        g(f"v_sub_f32 v{vP}, v{sc}, v{mx}")
        g(f"v_mul_f32 v{al}, {fx(LOG2E)}, v{al}")
        g(f"v_mul_f32 v{vP}, {fx(LOG2E)}, v{vP}")
        g(f"v_exp_f32 v{al}, v{al}")
        g(f"v_exp_f32 v{vP}, v{vP}")
        g(f"v_mov_b32 v{vM}, v{mx}")
        g(f"v_fma_f32 v{vL}, v{vL}, v{al}, v{vP}")
        for k in range(8): g(f"v_mul_f32 v{vAcc+k}, v{vAcc+k}, v{al}")
    def vphase(wait, refill):
        for j in range(LPT):
            g(f"s_waitcnt vmcnt({wait})")
            v = vV + 4*j
            for t in range(4):
                g(f"v_lshlrev_b32 v{vU+2*t}, 16, v{v+t}")
                g(f"v_and_b32 v{vU+2*t+1}, s43, v{v+t}")
            vload(j, refill)
            for k in range(8):
                g(f"v_fmac_f32_dpp v{vAcc+k}, v{vP}, v{vU+k} row_newbcast:{j} {DPPF}")

    if C.kx:
        setoff(vOffA, None, NW*4*UB, vOffB)
        kphase(vK, lambda j: 47, vOffA)
        softmax(False)
        vphase(47, vOffB)
        atomic()
        kphase(vKx, lambda j: 33 if j == 0 else None, None)
        softmax(False)
        vphase(16, vOffA)
        g("s_mov_b32 s62, 16")
        g("s_waitcnt vmcnt(16)")
        g("s_branch L_top2")
    else:
        g(f"s_lshl_b32 s46, s53, 2")
        g(f"s_add_u32 s46, s46, {NW*4}")
        g("s_mov_b32 s62, 16")
        g("s_branch L_entry")
    g("L_top:")
    g(f"s_waitcnt vmcnt({2*LPT})")
    g("L_top2:")
    g(f"v_readfirstlane_b32 s46, v{vTk}")
    g(f"s_add_u32 s46, s46, {NSTAT*NW*4}")
    g("L_entry:")
    g("s_mov_b32 s60, s62")
    g("s_add_u32 s47, s46, s61")
    g(f"s_min_u32 s52, s47, {NU}")
    g("s_sub_u32 s62, s52, s46")
    g("s_lshl_b32 s62, s62, 2")
    g("s_lshl_b32 s52, s52, 12")
    g(f"s_cmp_ge_u32 s46, {NU}")
    g("s_cselect_b32 s52, 0, s52")
    g("s_mov_b32 s34, s52")
    g("s_mov_b32 s38, s52")
    g("s_mov_b32 s61, 1")
    g(f"s_cmp_lt_u32 s47, {NU-C.r2}")
    g("s_cselect_b32 s61, 2, s61")
    g(f"s_cmp_lt_u32 s47, {NU-C.r4}")
    g("s_cselect_b32 s61, 4, s61")
    g(f"v_mov_b32 v{vN}, s61")
    atomic()
    g("s_lshl_b32 s47, s46, 12")
    setoff(vOffA, "s47")
    kphase(vK, lambda j: 32, vOffA)
    softmax(True)
    vphase(32, vOffA)
    g(f"s_cmp_lt_u32 s46, {NU}")
    g("s_cbranch_scc1 L_top")
    g.stamp(3)
    g(f"v_lshlrev_b32 v45, 1, v{vL16}")
    g("s_lshl_b32 s54, s3, 11")
    g("v_add_u32 v45, s54, v45")
    g(f"ds_write_b128 v45, v[{vAcc}:{vAcc+3}] offset:{L_SP}")
    g(f"ds_write_b128 v45, v[{vAcc+4}:{vAcc+7}] offset:{L_SP+16}")
    row_allreduce(g, [vL], "v_add_f32")
    g(f"v_lshrrev_b32 v46, 8, v{vL16}")
    g("v_lshlrev_b32 v46, 3, v46")
    g("s_lshl_b32 s54, s3, 5")
    g("v_add_u32 v46, s54, v46")
    g("s_mov_b32 exec_lo, 0x00010001\ns_mov_b32 exec_hi, 0x00010001")
    g(f"ds_write_b64 v46, v[{vM}:{vM+1}] offset:{L_ST}")
    g("s_mov_b64 exec, -1")
    g("s_waitcnt lgkmcnt(0)")
    g("s_barrier")
    if C.stamps: stamp_store(g, "s3", range(0, 4), only_wave=0)
    g("s_endpgm")
    return vOffB + 4

def aux(g):
    g("s_sub_u32 s34, s3, 4")
    vLane, vC, vG, vHalf = 1, 2, 3, 12
    MK = 104
    g(f"v_and_b32 v{vC}, 15, v{vLane}")
    g(f"v_lshrrev_b32 v{vG}, 4, v{vLane}")
    g(f"v_lshlrev_b32 v11, 4, v{vC}")
    g("s_mul_i32 s52, s34, 1280")
    g("s_mul_i32 s53, s31, 160")
    g("s_add_u32 s53, s53, s52")
    g(f"v_cmp_gt_u32 vcc, 40, v{vLane}")
    g(f"v_lshlrev_b32 v9, 5, v{vLane}")
    g("v_add_u32 v9, s52, v9")
    g(f"v_lshlrev_b32 v15, 2, v{vLane}")
    g("v_add_u32 v15, s53, v15")
    g(f"v_mov_b32 v13, {OOB}")
    g("v_cndmask_b32 v9, v13, v9, vcc")
    g("v_cndmask_b32 v15, v13, v15, vcc")
    g(f"v_lshlrev_b32 v10, 13, v{vG}")
    g("v_add_u32 v10, v10, v11")
    g("s_mul_i32 s35, s31, 80")
    g("s_mul_i32 s52, s34, 20")
    g("s_add_u32 s35, s35, s52")
    g("s_lshl_b32 s52, s35, 13")
    g("s_lshl_b32 s53, s30, 8")
    g("s_add_u32 s52, s52, s53")
    g("s_mov_b32 s42, 5120\ns_mov_b32 s43, 0x20000\ns_mov_b32 s46, 5242880\ns_mov_b32 s47, 0x20000")
    g("s_waitcnt lgkmcnt(0)")
    g("s_mov_b32 s40, s4\ns_mov_b32 s41, s5")
    X = 16
    g(f"buffer_load_dwordx4 v[{X}:{X+3}], v9, s[40:43], 0 offen")
    g(f"buffer_load_dwordx4 v[{X+4}:{X+7}], v9, s[40:43], 0 offen offset:16")
    g(f"buffer_load_dword v{X+8}, v15, s[40:43], 0 offen")
    g("s_mov_b32 s44, s10\ns_mov_b32 s45, s11")
    WQ = 36; W1 = 56; B1R = 76
    for j in range(5):
        g(f"buffer_load_dwordx4 v[{WQ+4*j}:{WQ+4*j+3}], v10, s[44:47], s52 offen nt")
        if j < 4: g("s_add_u32 s52, s52, 32768")
    g(f"s_load_dword s96, s[28:29], {WS_EPOCH}")
    srd(g, 36, 28, WS_SIZE)
    g("s_lshl_b32 s54, s32, 6")
    g("s_add_u32 s54, s54, s30")
    g("s_lshl_b32 s54, s54, 8")
    if WS_TICK: g(f"s_add_u32 s54, s54, {WS_TICK}")
    g("s_cmp_lg_u32 s33, 0")
    g(f"s_cselect_b32 s54, {OOB}, s54")
    g("s_cmp_lg_u32 s34, 2")
    g(f"s_cselect_b32 s54, {OOB}, s54")
    g(f"v_lshlrev_b32 v171, 13, v{vLane}")
    g(f"v_cmp_gt_u32 vcc, 2, v{vLane}")
    g(f"v_mov_b32 v172, {OOB}")
    g("v_add_u32 v171, s54, v171")
    g("v_cndmask_b32 v171, v172, v171, vcc")
    g("v_mov_b32 v172, 0")
    g("buffer_store_dword v172, v171, s[36:39], 0 offen sc1")
    NCLR = 1
    g("s_barrier")
    g(f"v_lshlrev_b32 v8, 4, v{vLane}")
    g("s_mov_b32 s95, 0xff")
    g("s_mov_b32 s97, 255\ns_mov_b32 s98, 255\ns_mov_b32 s99, 0\ns_mov_b32 s62, 255")
    g("s_sub_u32 s52, s31, 1")
    g("s_cmp_lt_u32 s31, 3\ns_cselect_b32 s97, s31, s97")
    g("s_cmp_eq_u32 s31, 4\ns_cselect_b32 s97, s52, s97")
    g("s_cmp_eq_u32 s31, 5\ns_cselect_b32 s97, s52, s97")
    g("s_mul_i32 s52, s30, 3")
    g("s_cmp_eq_u32 s31, 3\ns_cselect_b32 s98, 0, s98\ns_cselect_b32 s99, 2, s99\ns_cselect_b32 s62, s52, s62")
    g("s_add_u32 s52, s52, 1")
    g("s_cmp_eq_u32 s31, 6\ns_cselect_b32 s98, 2, s98\ns_cselect_b32 s99, 2, s99\ns_cselect_b32 s62, s52, s62")
    g("s_add_u32 s52, s52, 1")
    g("s_cmp_eq_u32 s31, 7\ns_cselect_b32 s98, 4, s98\ns_cselect_b32 s99, 1, s99\ns_cselect_b32 s62, s52, s62")
    g("s_lshl_b32 s52, s30, 2")
    g("s_lshl_b32 s53, s32, 1")
    g("s_add_u32 s52, s52, s53")
    g("s_lshl_b32 s52, s52, 2")
    g("s_add_u32 s52, s52, s33")
    g("s_lshl_b32 s52, s52, 10")
    g(f"s_add_u32 s57, s52, {WS_P1}")
    g("s_mul_i32 s56, s30, 5")
    g(f"v_and_b32 v100, 7, v{vLane}")
    g("v_lshrrev_b32 v101, 1, v100")
    g("v_and_b32 v100, 1, v100")
    g("v_lshlrev_b32 v100, 4, v100")
    g("v_mov_b32 v102, 0xffff")
    g("v_lshlrev_b32 v102, v100, v102")
    for q in range(4):
        g(f"v_cmp_eq_u32 vcc, {q}, v101")
        g("s_nop 1")
        g(f"v_cndmask_b32 v{MK+q}, 0, v102, vcc")
    g(f"v_lshrrev_b32 v{vHalf}, 3, v{vLane}")
    g(f"v_and_b32 v{vHalf}, 1, v{vHalf}")
    g(f"v_mul_u32_u24 v102, 320, v{vHalf}")
    g("s_mul_i32 s52, s34, 20")
    g(f"v_add_u32 v79, s52, v{vG}")
    g("v_lshlrev_b32 v79, 2, v79")
    g("v_add_u32 v102, v102, v79")
    g("s_mul_i32 s52, s34, 320")
    g(f"v_lshlrev_b32 v79, 3, v{vLane}")
    g("v_add_u32 v79, s52, v79")
    g("v_mov_b32 v90, 0x3f803f80")
    g("v_mov_b32 v91, 0\nv_mov_b32 v92, 0\nv_mov_b32 v93, 0\nv_mov_b32 v94, 0")
    g(f"v_lshrrev_b32 v100, 1, v{vG}")
    g("v_lshlrev_b32 v100, 9, v100")
    g(f"v_lshlrev_b32 v101, 5, v{vC}")
    g("v_add_u32 v100, v100, v101")
    g(f"v_and_b32 v101, 1, v{vG}")
    g("v_lshlrev_b32 v101, 4, v101")
    g("v_add_u32 v103, v100, v101")
    g(f"v_mul_u32_u24 v14, 1280, v{vG}")
    g("v_add_u32 v14, v14, v11")
    g(f"v_and_b32 v109, 31, v{vLane}")
    g("v_lshlrev_b32 v13, 4, v109")
    g(f"s_waitcnt vmcnt({5+NCLR})")
    g.stamp(4)
    for t in range(0, 8, 2):
        g(f"v_dot2c_f32_bf16 v91, v{X+t}, v90")
        g(f"v_dot2c_f32_bf16 v92, v{X+t}, v{X+t}")
        g(f"v_dot2c_f32_bf16 v93, v{X+t+1}, v90")
        g(f"v_dot2c_f32_bf16 v94, v{X+t+1}, v{X+t+1}")
    g(f"v_lshlrev_b32 v95, 16, v{X+8}")
    g(f"v_and_b32 v96, 0xffff0000, v{X+8}")
    g("s_nop 0")
    g("v_add_f32 v91, v91, v93")
    g("v_add_f32 v92, v92, v94")
    row_allreduce(g, [91, 92], "v_add_f32")
    multi_xswap(g, [91, 92], [93, 94], 16)
    multi_xswap(g, [91, 92], [93, 94], 32)
    g(f"v_mul_f32 v91, {fx(1/640)}, v91")
    g(f"v_mul_f32 v92, {fx(1/640)}, v92")
    g("v_fma_f32 v92, -v91, v91, v92")
    g("v_max_f32 v92, 0, v92")
    g("v_cvt_pk_bf16_f32 v91, v91, v92")
    g("v_and_b32 v92, 0xffff0000, v91")
    g("v_lshlrev_b32 v91, 16, v91")
    g(f"v_add_f32 v92, {fx(1e-5)}, v92")
    g("v_sub_f32 v95, v95, v91")
    g("v_sub_f32 v96, v96, v91")
    bf16r(g, 92, 92)
    g("v_cvt_pk_bf16_f32 v95, v95, v96")
    g("v_sqrt_f32 v92, v92")
    g("v_and_b32 v96, 0xffff0000, v95")
    g("v_lshlrev_b32 v95, 16, v95")
    bf16r(g, 92, 92)
    g("v_rcp_f32 v93, v92")
    g("s_nop 0")
    g("v_mul_f32 v97, v95, v93")
    g("v_mul_f32 v98, v96, v93")
    g("v_fma_f32 v99, -v97, v92, v95")
    g("v_fma_f32 v100, -v98, v92, v96")
    g("v_fma_f32 v97, v99, v93, v97")
    g("v_fma_f32 v98, v100, v93, v98")
    g("v_cvt_pk_bf16_f32 v99, v98, v98")
    g("v_cvt_pk_bf16_f32 v98, v97, v97")
    g("s_mov_b32 exec_hi, 0xff")
    g(f"ds_write_b64 v79, v[98:99] offset:{L_XN}")
    g("s_mov_b64 exec, -1")
    g("s_waitcnt lgkmcnt(0)")
    lds_arrive_wait(g, 0, 4)
    g(f"s_waitcnt vmcnt({NCLR})")
    g.stamp(14)
    DQ = 148; DH = 156
    diag_mfma(g, 102, 640, 16, 5, [WQ], [DQ], 108, MK, L_XN)
    g("s_lshl_b32 s52, s34, 11")
    g("v_add_u32 v100, s52, v103")
    g(f"ds_write_b128 v100, v[{DQ}:{DQ+3}] offset:{L_QPL}")
    g(f"ds_write_b128 v100, v[{DQ+4}:{DQ+7}] offset:{L_QPL+1024}")
    g("s_waitcnt vmcnt(0) lgkmcnt(0)")
    g("s_add_u32 s96, s96, 1")
    g(f"v_mov_b32 v{TAG}, s96")
    lds_arrive_wait(g, 1, 4)
    g.stamp(5)
    def sum4_lds(vaddr, R, base, stride=2048):
        for a2 in range(4):
            g(f"ds_read_b128 v[{R+4*a2}:{R+4*a2+3}], v{vaddr} offset:{base + a2*stride}")
        g("s_waitcnt lgkmcnt(0)")
        for k in range(4): g(f"v_add_f32 v{R+k}, v{R+k}, v{R+4+k}")
        for k in range(4): g(f"v_add_f32 v{R+8+k}, v{R+8+k}, v{R+12+k}")
        for k in range(4): g(f"v_add_f32 v{R+k}, v{R+k}, v{R+8+k}")
    g("s_lshl_b32 s52, s34, 9")
    g("v_add_u32 v15, s52, v13")
    g("s_lshl_b32 s100, s2, 12")
    g(f"s_add_u32 s100, s100, {WS_QP}")
    sum4_lds(15, 16, L_QPL)
    tagw(g, range(16, 20))
    g("s_mov_b32 exec_hi, 0")
    g("buffer_store_dwordx4 v[16:19], v15, s[36:39], s100 offen sc1")
    g("s_mov_b64 exec, -1")
    g.stamp(6)
    GQ = 112
    l_noq = g.label("noq")
    g("s_cmp_ge_u32 s34, 2")
    g(f"s_cbranch_scc1 {l_noq}")
    g("s_lshl_b32 s52, s30, 15")
    g("s_lshl_b32 s53, s32, 1")
    g("s_add_u32 s53, s53, s34")
    g("s_lshl_b32 s53, s53, 9")
    g("s_add_u32 s52, s52, s53")
    g(f"s_add_u32 s52, s52, {WS_QP}")
    g(f"s_sleep {C.sleepg}")
    g(f"v_lshlrev_b32 v{GQ+16}, 12, v{vLane}")
    g(f"v_add_u32 v{GQ+16}, 508, v{GQ+16}")
    g("s_mov_b64 exec, 0xff")
    def lightload(): g(f"buffer_load_dword v{GQ}, v{GQ+16}, s[36:39], s52 offen sc1")
    poll_tag(g, lightload, [GQ], "ql")
    g("s_mov_b64 exec, -1")
    g(f"v_lshrrev_b32 v{GQ+16}, 5, v{vLane}")
    g(f"v_lshlrev_b32 v{GQ+16}, 12, v{GQ+16}")
    g(f"v_add_u32 v{GQ+16}, v{GQ+16}, v13")
    def qloads():
        g("s_mov_b32 s53, s52")
        for t in range(4):
            g(f"buffer_load_dwordx4 v[{GQ+4*t}:{GQ+4*t+3}], v{GQ+16}, s[36:39], s53 offen sc1")
            if t < 3: g("s_add_u32 s53, s53, 8192")
    poll_tag(g, qloads, list(range(GQ, GQ+16)), "q", tmp=GQ+18)
    for k in range(4): g(f"v_add_f32 v{GQ+k}, v{GQ+k}, v{GQ+4+k}")
    for k in range(4): g(f"v_add_f32 v{GQ+8+k}, v{GQ+8+k}, v{GQ+12+k}")
    for k in range(4): g(f"v_add_f32 v{GQ+k}, v{GQ+k}, v{GQ+8+k}")
    multi_xswap(g, [GQ+k for k in range(4)], [GQ+4+k for k in range(4)], 32)
    g(f"v_cvt_pk_bf16_f32 v{GQ}, v{GQ}, v{GQ+1}")
    g(f"v_cvt_pk_bf16_f32 v{GQ+1}, v{GQ+2}, v{GQ+3}")
    g("v_lshrrev_b32 v17, 1, v13")
    g("s_lshl_b32 s52, s34, 8")
    g("v_add_u32 v17, s52, v17")
    g(f"ds_write_b64 v17, v[{GQ}:{GQ+1}] offset:{L_QL}")
    g("s_waitcnt lgkmcnt(0)")
    g(f"{l_noq}:")
    g.stamp(7)
    g("s_barrier")
    g.stamp(8)
    srd(g, 48, 16, 2211840)
    g(f"v_cmp_gt_u32 vcc, 7, v{vC}")
    g(f"v_mul_u32_u24 v78, 3456, v{vG}")
    g("v_add_u32 v78, v78, v11")
    g(f"v_mov_b32 v79, {OOB}")
    g("v_cndmask_b32 v78, v79, v78, vcc")
    g("s_mul_i32 s54, s35, 3456")
    g("s_mul_i32 s55, s30, 108")
    g("s_add_u32 s54, s54, s55")
    for j in range(5):
        g(f"buffer_load_dwordx4 v[{W1+4*j}:{W1+4*j+3}], v78, s[48:51], s54 offen nt")
        if j < 4: g("s_add_u32 s54, s54, 13824")
    g("s_waitcnt vmcnt(0)")
    diag_mfma(g, 102, 640, 16, 5, [W1], [DH], 108, MK, L_XN)
    g("s_lshl_b32 s52, s34, 11")
    g("v_add_u32 v100, s52, v103")
    g(f"ds_write_b128 v100, v[{DH}:{DH+3}] offset:{L_HPL}")
    g(f"ds_write_b128 v100, v[{DH+4}:{DH+7}] offset:{L_HPL+1024}")
    g("s_waitcnt lgkmcnt(0)")
    lds_arrive_wait(g, 4, 4)
    sum4_lds(15, 28, L_HPL)
    tagw(g, range(28, 32))
    g("s_lshl_b32 s52, s34, 8")
    g("v_add_u32 v100, s52, v13")
    g("s_add_u32 s52, s100, 2048")
    g("s_mov_b64 exec, 0xffff")
    g("buffer_store_dwordx4 v[28:31], v100, s[36:39], s52 offen sc1")
    g("s_mov_b64 exec, -1")
    WB = 16; SC = 48; DD = 80
    l_wo = g.label("wo"); l_b3 = g.label("b3")
    g("s_cmp_eq_u32 s99, 0")
    g(f"s_cbranch_scc1 {l_wo}")
    srd(g, 48, 18, 3456)
    g("s_mul_i32 s52, s30, 108")
    g(f"v_lshlrev_b32 v15, 3, v{vC}")
    g("v_add_u32 v15, s52, v15")
    g(f"buffer_load_dwordx2 v[{B1R}:{B1R+1}], v15, s[48:51], 0 offen")
    srd(g, 48, 20, 2211840)
    g("s_mul_i32 s52, s30, 54")
    g("s_lshl_b32 s53, s34, 4")
    g("s_add_u32 s52, s52, s53")
    g("s_mul_i32 s52, s52, 1280")
    g("s_lshl_b32 s54, s98, 8")
    g("s_add_u32 s52, s52, s54")
    g(f"v_add_u32 v78, s53, v{vG}")
    for jj in range(4):
        g(f"v_add_u32 v{88+jj}, s52, v14")
        g(f"v_cmp_gt_u32 vcc, {54-4*jj}, v78")
        g(f"v_mov_b32 v92, {OOB}")
        g("s_add_u32 s52, s52, 5120")
        g(f"v_cndmask_b32 v{88+jj}, v92, v{88+jj}, vcc")
    for jj in range(4):
        g(f"buffer_load_dwordx4 v[{WB+4*jj}:{WB+4*jj+3}], v{88+jj}, s[48:51], 0 offen nt")
    l_u1 = g.label("u1")
    g("s_cmp_lt_u32 s99, 2")
    g(f"s_cbranch_scc1 {l_u1}")
    for jj in range(4):
        g(f"buffer_load_dwordx4 v[{WB+16+4*jj}:{WB+16+4*jj+3}], v{88+jj}, s[48:51], 0 offen offset:256 nt")
    g(f"{l_u1}:")
    g("s_lshl_b32 s52, s30, 15")
    g("s_lshl_b32 s53, s34, 8")
    g("s_add_u32 s52, s52, s53")
    g(f"s_add_u32 s52, s52, {WS_QP+2048}")
    g(f"v_lshlrev_b32 v{GQ+16}, 12, v{vG}")
    g(f"v_add_u32 v{GQ+16}, v{GQ+16}, v11")
    def hloads():
        g(f"buffer_load_dwordx4 v[{GQ}:{GQ+3}], v{GQ+16}, s[36:39], s52 offen sc1")
        g("s_add_u32 s53, s52, 16384")
        g(f"buffer_load_dwordx4 v[{GQ+4}:{GQ+7}], v{GQ+16}, s[36:39], s53 offen sc1")
    poll_tag(g, hloads, list(range(GQ, GQ+8)), "h", tmp=GQ+18, sleep=4)
    for k in range(4): g(f"v_add_f32 v{GQ+k}, v{GQ+k}, v{GQ+4+k}")
    multi_xswap(g, [GQ+k for k in range(4)], [GQ+4+k for k in range(4)], 16)
    multi_xswap(g, [GQ+k for k in range(4)], [GQ+4+k for k in range(4)], 32)
    g(f"v_lshlrev_b32 v52, 16, v{B1R}\nv_and_b32 v53, 0xffff0000, v{B1R}\nv_lshlrev_b32 v54, 16, v{B1R+1}\nv_and_b32 v55, 0xffff0000, v{B1R+1}")
    for k in range(4): bf16r(g, GQ+k, GQ+k)
    for k in range(4): g(f"v_add_f32 v{GQ+k}, v{GQ+k}, v{52+k}")
    for k in range(4): bf16r(g, GQ+k, GQ+k)
    for k in range(4): g(f"v_max_f32 v{GQ+k}, 0, v{GQ+k}")
    for k in range(4): g(f"v_mul_f32 v{GQ+k}, v{GQ+k}, v{GQ+k}")
    for k in range(4): g(f"v_cvt_pk_bf16_f32 v{GQ+k}, v{GQ+k}, v{GQ+k}")
    g(f"v_lshlrev_b32 v52, 2, v{vC}")
    for k in range(4):
        g(f"v_cmp_gt_u32 vcc, {54-k}, v52")
        g("s_nop 1")
        g(f"v_cndmask_b32 v{GQ+k}, 0, v{GQ+k}, vcc")
    g("s_lshl_b32 s52, s34, 8")
    g("v_add_u32 v101, s52, v11")
    g("s_mov_b64 exec, 0xffff")
    g(f"ds_write_b128 v101, v[{GQ}:{GQ+3}] offset:{L_HL}")
    g("s_mov_b64 exec, -1")
    g("s_waitcnt lgkmcnt(0)")
    lds_arrive_wait(g, 2, 4)
    g(f"v_lshlrev_b32 v79, 8, v{vHalf}")
    g("v_lshlrev_b32 v78, 2, v78")
    g("v_add_u32 v78, v78, v79")
    g("s_waitcnt vmcnt(0)")
    DD2 = 92
    diag_mfma(g, 78, 512, 16, 4, [WB, WB+16], [DD, DD2], SC, MK, L_HL)
    g("s_lshl_b32 s52, s34, 11")
    g("v_add_u32 v100, s52, v103")
    g(f"ds_write_b128 v100, v[{DD}:{DD+3}] offset:{L_QPL}")
    g(f"ds_write_b128 v100, v[{DD+4}:{DD+7}] offset:{L_QPL+1024}")
    g(f"ds_write_b128 v100, v[{DD2}:{DD2+3}] offset:{L_HPL}")
    g(f"ds_write_b128 v100, v[{DD2+4}:{DD2+7}] offset:{L_HPL+1024}")
    g("s_waitcnt lgkmcnt(0)")
    lds_arrive_wait(g, 3, 4)
    g(f"v_lshrrev_b32 v108, 5, v{vLane}")
    g(f"v_mul_u32_u24 v110, {L_HPL-L_QPL}, v108")
    g(f"v_and_b32 v109, 31, v{vLane}")
    g("s_lshl_b32 s52, s34, 5")
    g("v_add_u32 v109, s52, v109")
    g("v_lshlrev_b32 v111, 2, v109")
    g("v_add_u32 v110, v110, v111")
    for a2 in range(4):
        for bb in range(4):
            g(f"ds_read_b32 v{112+4*a2+bb}, v110 offset:{L_QPL + a2*2048 + bb*512}")
    g("s_waitcnt lgkmcnt(0)")
    for k in range(4): g(f"v_add_f32 v{112+k}, v{112+k}, v{116+k}")
    for k in range(4): g(f"v_add_f32 v{120+k}, v{120+k}, v{124+k}")
    for k in range(4): g(f"v_add_f32 v{112+k}, v{112+k}, v{120+k}")
    tagw(g, range(112, 116))
    g("s_add_u32 s52, s56, s98")
    g("s_lshl_b32 s52, s52, 11")
    g(f"s_add_u32 s52, s52, {WS_YM}")
    g("v_lshlrev_b32 v110, 11, v108")
    g("v_lshlrev_b32 v111, 4, v109")
    g("v_add_u32 v110, v110, v111")
    g("s_cmp_lt_u32 s99, 2")
    g("s_cselect_b32 exec_hi, 0, -1")
    g("buffer_store_dwordx4 v[112:115], v110, s[36:39], s52 offen sc1")
    g("s_mov_b64 exec, -1")
    g("s_cmp_ge_u32 s62, 80")
    g(f"s_cbranch_scc1 {l_b3}")
    g("s_cmp_lg_u32 s34, 0")
    g(f"s_cbranch_scc1 {l_b3}")
    g("s_lshr_b32 s54, s62, 4")
    g("s_and_b32 s53, s62, 15")
    g("s_lshl_b32 s55, s54, 11")
    g("s_lshl_b32 s63, s53, 7")
    g("s_add_u32 s55, s55, s63")
    g("s_lshl_b32 s63, s62, 4")
    g(f"v_lshrrev_b32 v88, 3, v{vLane}")
    g(f"v_and_b32 v89, 7, v{vLane}")
    g("v_lshlrev_b32 v90, 4, v89")
    g("v_lshlrev_b32 v91, 1, v89")
    g("v_add_u32 v91, s63, v91")
    srd(g, 48, 22, 1280)
    g("buffer_load_ushort v94, v91, s[48:51], 0 offen")
    for k in range(4):
        g(f"buffer_load_ushort v{80+k}, v91, s[40:43], 0 offen offset:{1280*k}")
    g("v_mul_u32_u24 v93, 10240, v88")
    g("v_add_u32 v93, v93, v90")
    YR = 16
    def recloads(base):
        def f():
            g(f"s_add_u32 s52, s55, {base}")
            for t in range(4):
                g(f"buffer_load_dwordx4 v[{YR+4*t}:{YR+4*t+3}], v93, s[36:39], s52 offen sc1")
                if t < 3: g("s_add_u32 s52, s52, 81920")
        return f
    def red8(R, T):
        for t in range(1, 4):
            for k in range(4): g(f"v_add_f32 v{R+k}, v{R+k}, v{R+4*t+k}")
        g("s_nop 1")
        for k in range(4): g(f"v_add_f32_dpp v{R+k}, v{R+k}, v{R+k} row_ror:8 {DPPF}")
        multi_xswap(g, [R+k for k in range(4)], [T+k for k in range(4)], 16)
        multi_xswap(g, [R+k for k in range(4)], [T+k for k in range(4)], 32)
    poll_tag(g, recloads(WS_YM), list(range(YR, YR+16)), "ym", sleep=8)
    red8(YR, YR+4)
    for k in range(4): g(f"v_lshlrev_b32 v{80+k}, 16, v{80+k}")
    g("v_lshlrev_b32 v94, 16, v94")
    for k in range(4): bf16r(g, YR+k, YR+k)
    for k in range(4): g(f"v_add_f32 v{84+k}, v{YR+k}, v94")
    for k in range(4): bf16r(g, 84+k, 84+k)
    g(f"s_branch {l_b3}")
    g(f"{l_wo}:")
    srd(g, 48, 12, 5242880)
    g("s_lshl_b32 s52, s30, 7")
    g("s_mul_i32 s52, s52, 1280")
    g("s_lshl_b32 s53, s97, 8")
    g("s_add_u32 s52, s52, s53")
    g("s_lshl_b32 s53, s34, 6")
    g("s_add_u32 s52, s52, s53")
    g(f"v_lshrrev_b32 v78, 2, v{vLane}")
    g("v_mul_u32_u24 v78, 1280, v78")
    g(f"v_and_b32 v79, 3, v{vLane}")
    g("v_lshlrev_b32 v79, 4, v79")
    g("v_add_u32 v78, v78, v79")
    for r in range(8):
        g(f"buffer_load_dwordx4 v[{WB+4*r}:{WB+4*r+3}], v78, s[48:51], s52 offen nt")
        if r < 7: g(f"s_add_u32 s52, s52, {16*1280}")
    g("s_lshl_b32 s52, s34, 13")
    g("v_add_u32 v79, s52, v8")
    g("v_mov_b32 v88, 0\nv_mov_b32 v89, 0\nv_mov_b32 v90, 0\nv_mov_b32 v91, 0")
    g("s_mov_b64 exec, 0xffff")
    g(f"ds_write_b128 v8, v[88:91] offset:{L_OL+1024}")
    g("s_mov_b64 exec, -1")
    for r in range(8):
        g(f"s_waitcnt vmcnt({7-r})")
        g(f"ds_write_b128 v79, v[{WB+4*r}:{WB+4*r+3}] offset:{L_WT + r*1024}")
    g(f"v_lshlrev_b32 v78, 9, v{vG}")
    g(f"v_lshlrev_b32 v79, 1, v{vC}")
    g("v_add_u32 v78, v78, v79")
    g("v_add_u32 v78, s52, v78")
    g("s_waitcnt lgkmcnt(0)")
    for s_ in range(4):
        for t in range(2):
            for q in range(4):
                r = WB + (s_*2+t)*4 + q
                off = L_WT + s_*2048 + q*128 + t*32
                g(f"ds_read_u16 v{r}, v78 offset:{off}")
                g(f"ds_read_u16 v{112+t*4+q}, v78 offset:{off+64}")
        g("s_waitcnt lgkmcnt(0)")
        for t in range(2):
            for q in range(4):
                r = WB + (s_*2+t)*4 + q
                g(f"v_lshl_or_b32 v{r}, v{112+t*4+q}, 16, v{r}")
    g(f"v_lshlrev_b32 v78, 8, v{vC}")
    g(f"v_lshlrev_b32 v79, 4, v{vG}")
    g("v_add_u32 v78, v78, v79")
    g(f"v_cmp_gt_u32 vcc, 4, v{vC}")
    g("v_mov_b32 v79, 1024")
    g("s_nop 0")
    g("v_cndmask_b32 v78, v79, v78, vcc")
    g(f"{l_b3}:")
    g.stamp(9)
    g("s_barrier")
    g.stamp(10)
    l_t1 = g.label("t1")
    g("s_cmp_lg_u32 s34, 0")
    g(f"s_cbranch_scc1 {l_t1}")
    g(f"v_lshrrev_b32 v108, 5, v{vLane}")
    g("v_lshlrev_b32 v110, 11, v108")
    g("v_add_u32 v110, v110, v13")
    AC = 112; STt = 144
    g("v_lshlrev_b32 v160, 5, v108")
    for s_ in range(2):
        for r in range(0, 4, 2):
            p = s_*4+r
            g(f"ds_read_b128 v[{STt+2*p}:{STt+2*p+3}], v160 offset:{L_ST + s_*64 + r*8}")
    for s_ in range(2):
        for r in range(4):
            p = s_*4+r
            g(f"ds_read_b128 v[{AC+4*p}:{AC+4*p+3}], v110 offset:{L_SP + s_*4096 + r*512}")
    g("s_waitcnt lgkmcnt(8)")
    g(f"v_max3_f32 v161, v{STt}, v{STt+2}, v{STt+4}")
    g(f"v_max3_f32 v161, v161, v{STt+6}, v{STt+8}")
    g(f"v_max3_f32 v161, v161, v{STt+10}, v{STt+12}")
    g(f"v_max_f32 v161, v161, v{STt+14}")
    for p in range(8): g(f"v_sub_f32 v{STt+2*p}, v{STt+2*p}, v161")
    for p in range(8): g(f"v_mul_f32 v{STt+2*p}, {fx(LOG2E)}, v{STt+2*p}")
    for p in range(8): g(f"v_exp_f32 v{STt+2*p}, v{STt+2*p}")
    g("s_nop 0")
    g(f"v_mul_f32 v162, v{STt}, v{STt+1}")
    for p in range(1, 8): g(f"v_fmac_f32 v162, v{STt+2*p}, v{STt+2*p+1}")
    g("s_waitcnt lgkmcnt(0)")
    for k in range(4): g(f"v_mul_f32 v{164+k}, v{AC+k}, v{STt}")
    for p in range(1, 8):
        for k in range(4): g(f"v_fmac_f32 v{164+k}, v{AC+4*p+k}, v{STt+2*p}")
    tagw(g, range(164, 168))
    g("v_lshlrev_b32 v163, 12, v108")
    g("v_add_u32 v163, v163, v13")
    g("buffer_store_dwordx4 v[164:167], v163, s[36:39], s57 offen sc1")
    g("v_mov_b32 v168, v161\nv_mov_b32 v169, v162")
    tagw(g, [168, 169])
    g("s_mov_b32 exec_lo, 1\ns_mov_b32 exec_hi, 1")
    g("buffer_store_dwordx2 v[168:169], v163, s[36:39], s57 offen offset:512 sc1")
    g("s_mov_b64 exec, -1")
    g.stamp(11)
    g(f"{l_t1}:")
    l_notunit = g.label("notunit")
    g("s_cmp_ge_u32 s97, 5")
    g(f"s_cbranch_scc1 {l_notunit}")
    g(f"v_lshrrev_b32 v108, 5, v{vLane}")
    g("v_lshlrev_b32 v110, 10, v108")
    g("v_add_u32 v111, v110, v13")
    g("s_lshl_b32 s52, s30, 2")
    g("s_add_u32 s52, s52, s34")
    g("s_lshl_b32 s52, s52, 12")
    g(f"s_add_u32 s59, s52, {WS_P1}")
    O0, O1, S0, S1 = 112, 116, 120, 122
    def h1loads():
        g(f"buffer_load_dwordx4 v[{O0}:{O0+3}], v111, s[36:39], s59 offen sc1")
        g(f"buffer_load_dwordx4 v[{O1}:{O1+3}], v111, s[36:39], s59 offen offset:2048 sc1")
        g(f"buffer_load_dwordx2 v[{S0}:{S0+1}], v110, s[36:39], s59 offen offset:512 sc1")
        g(f"buffer_load_dwordx2 v[{S1}:{S1+1}], v110, s[36:39], s59 offen offset:2560 sc1")
    poll_tag(g, h1loads, list(range(O0, O0+12)), "h1", sleep=0)
    g.stamp(12)
    g(f"v_and_b32 v{S0}, 0xffffff00, v{S0}")
    g(f"v_and_b32 v{S1}, 0xffffff00, v{S1}")
    g(f"v_max_f32 v124, v{S0}, v{S1}")
    multi_xswap(g, [124], [125], 32, "v_max_f32")
    g(f"v_sub_f32 v{S0}, v{S0}, v124")
    g(f"v_sub_f32 v{S1}, v{S1}, v124")
    g(f"v_mul_f32 v{S0}, {fx(LOG2E)}, v{S0}")
    g(f"v_mul_f32 v{S1}, {fx(LOG2E)}, v{S1}")
    g(f"v_exp_f32 v{S0}, v{S0}")
    g(f"v_exp_f32 v{S1}, v{S1}")
    g("s_nop 0")
    g(f"v_mul_f32 v128, v{S0}, v{S0+1}")
    g(f"v_fmac_f32 v128, v{S1}, v{S1+1}")
    for k in range(4): g(f"v_mul_f32 v{129+k}, v{O0+k}, v{S0}")
    for k in range(4): g(f"v_fmac_f32 v{129+k}, v{O1+k}, v{S1}")
    multi_xswap(g, [128+k for k in range(5)], [134+k for k in range(5)], 32)
    g("v_rcp_f32 v133, v128")
    g("s_nop 0")
    for k in range(4): g(f"v_mul_f32 v{134+k}, v{129+k}, v133")
    for k in range(4): g(f"v_fma_f32 v{138+k}, -v{134+k}, v128, v{129+k}")
    for k in range(4): g(f"v_fma_f32 v{134+k}, v{138+k}, v133, v{134+k}")
    g("v_cvt_pk_bf16_f32 v140, v134, v135")
    g("v_cvt_pk_bf16_f32 v141, v136, v137")
    g("v_lshrrev_b32 v134, 1, v13")
    g("s_lshl_b32 s52, s34, 8")
    g("v_add_u32 v134, s52, v134")
    g(f"ds_write_b64 v134, v[140:141] offset:{L_OL}")
    g("s_add_u32 s52, s56, s97")
    g("s_lshl_b32 s52, s52, 11")
    g("s_lshl_b32 s53, s34, 9")
    g("s_add_u32 s52, s52, s53")
    g(f"s_add_u32 s52, s52, {WS_Y}")
    g("s_waitcnt lgkmcnt(0)")
    g("s_barrier")
    for s_ in range(4):
        g(f"ds_read_b128 v[{112+4*s_}:{112+4*s_+3}], v78 offset:{L_OL + s_*64}")
    for s_ in range(4):
        g(f"s_waitcnt lgkmcnt({3-s_})")
        for t in range(2):
            c = "0" if s_ == 0 else f"v[{DD+4*t}:{DD+4*t+3}]"
            B = WB + (s_*2+t)*4
            g(f"v_mfma_f32_16x16x32_bf16 v[{DD+4*t}:{DD+4*t+3}], v[{112+4*s_}:{112+4*s_+3}], v[{B}:{B+3}], {c}")
    g("s_nop 7")
    tagw(g, range(DD, DD+8))
    g("s_mov_b64 exec, 0xffff")
    g(f"buffer_store_dwordx4 v[{DD}:{DD+3}], v11, s[36:39], s52 offen sc1")
    g(f"buffer_store_dwordx4 v[{DD+4}:{DD+7}], v11, s[36:39], s52 offen offset:256 sc1")
    g("s_mov_b64 exec, -1")
    g.stamp(13)
    if C.stamps: stamp_store(g, "s3", range(4, 15), only_wave=4)
    g("s_endpgm")
    g(f"{l_notunit}:")
    g("s_cmp_lg_u32 s34, 0")
    g("s_cbranch_scc1 L_end")
    l_st = g.label("stonly")
    g("s_cmp_ge_u32 s62, 80")
    g(f"s_cbranch_scc1 {l_st}")
    poll_tag(g, recloads(WS_Y), list(range(YR, YR+16)), "y", sleep=0)
    g.stamp(12)
    red8(YR, YR+4)
    for k in range(4): bf16r(g, YR+k, YR+k)
    for k in range(4): g(f"v_add_f32 v{YR+k}, v{YR+k}, v{80+k}")
    for k in range(4): bf16r(g, YR+k, YR+k)
    for k in range(4): g(f"v_add_f32 v{YR+k}, v{YR+k}, v{84+k}")
    for k in range(4): g(f"v_cvt_pk_bf16_f32 v{YR+k}, v{YR+k}, v{YR+k}")
    srd(g, 48, 24, 5120)
    g("s_mov_b64 exec, 0xff")
    for k in range(4):
        g(f"buffer_store_short v{YR+k}, v91, s[48:51], 0 offen offset:{1280*k}")
    l_ep = g.label("ep")
    g("s_cmp_lg_u32 s62, 0")
    g(f"s_cbranch_scc1 {l_ep}")
    g("s_mov_b64 exec, 1")
    g(f"v_mov_b32 v92, {WS_EPOCH}")
    g(f"buffer_store_dword v{TAG}, v92, s[36:39], 0 offen sc1")
    g(f"{l_ep}:")
    g("s_mov_b64 exec, -1")
    g.stamp(13)
    g(f"{l_st}:")
    if C.stamps: stamp_store(g, "s3", range(4, 15), only_wave=4)
    g("s_endpgm")

def gen():
    g = G()
    g(f"{KN}:")
    g("s_cmp_ge_u32 s2, 256")
    g("s_cbranch_scc1 L_end")
    if C.dbgst:
        for k in range(15): g(f"s_mov_b32 s{64+2*k}, 0")
    g.stamp(0)
    g("s_load_dwordx16 s[4:19], s[0:1], 0")
    g("s_load_dwordx8 s[20:27], s[0:1], 64")
    g("s_load_dwordx2 s[28:29], s[0:1], 96")
    g("v_lshrrev_b32 v1, 6, v0")
    g("s_lshr_b32 s30, s2, 3")
    g("v_readfirstlane_b32 s3, v1")
    g("s_and_b32 s31, s2, 7")
    g("v_and_b32 v1, 63, v0")
    if C.qmap == 0:
        g("s_lshr_b32 s32, s31, 2")
        g("s_and_b32 s33, s31, 3")
    elif C.qmap == 1:
        g("s_bfe_u32 s32, s31, 0x10001")
        g("s_lshr_b32 s33, s31, 2")
        g("s_lshl_b32 s33, s33, 1")
        g("s_and_b32 s34, s31, 1")
        g("s_or_b32 s33, s33, s34")
    elif C.qmap == 2:
        g("s_lshr_b32 s32, s31, 1")
        g("s_xor_b32 s32, s32, s31")
        g("s_and_b32 s32, s32, 1")
        g("s_lshr_b32 s33, s31, 1")

    g("s_cmp_ge_u32 s3, 4")
    g("s_cbranch_scc1 L_aux")
    nv = streaming(g)
    g("L_aux:")
    aux(g)
    g("L_end:")
    g("s_endpgm")
    return g.text(), max(nv, 176)

HEADER = open("cdna_kernels/" + NAME + ".s.ref").read().split("; Override launch geometry")[0]

def build(path):
    body, nv = gen()
    nv = (nv + 3)//4*4
    assert nv <= 256
    txt = HEADER
    txt += "; Override launch geometry by editing the next line (default: block=256,\n"
    txt += f"; @launch grid=(256,1,1) block=(512,1,1) lds={LDS_BYTES}\n"
    txt += '.amdgcn_target "amdgcn-amd-amdhsa--gfx950"\n.text\n'
    txt += f".globl {KN}\n.p2align 8\n.type {KN},@function\n"
    txt += body
    txt += f""".section .rodata,"a"
.p2align 6
.amdhsa_kernel {KN}
  .amdhsa_next_free_vgpr {nv}
  .amdhsa_next_free_sgpr 102
  .amdhsa_accum_offset {nv}
  .amdhsa_group_segment_fixed_size 0
  .amdhsa_kernarg_size 104
  .amdhsa_user_sgpr_count 2
  .amdhsa_user_sgpr_kernarg_segment_ptr 1
  .amdhsa_system_sgpr_workgroup_id_x 1
.end_amdhsa_kernel
"""
    open(path, "w").write(txt)

if __name__ == "__main__":
    ap = argparse.ArgumentParser()
    ap.add_argument("-o", default="k.s")
    ap.add_argument("--stamps", action="store_true")
    ap.add_argument("--win", type=int, default=8)
    ap.add_argument("--sleepg", type=int, default=16)
    ap.add_argument("--kpol", default="nt")
    ap.add_argument("--vpol", default="nt")
    ap.add_argument("--nokx", action="store_true")
    ap.add_argument("--r4", type=int, default=0)
    ap.add_argument("--r2", type=int, default=0)
    ap.add_argument("--qmap", type=int, default=2)
    ap.add_argument("--dbgst", action="store_true")
    a = ap.parse_args()
    C.dbgst = a.dbgst
    if a.dbgst: a.stamps = True
    C.qmap = a.qmap
    C.stamps = a.stamps; C.win = a.win; C.sleepg = a.sleepg
    C.kpol = a.kpol.replace("_"," "); C.vpol = a.vpol.replace("_"," ")
    C.kx = not a.nokx; C.r4 = a.r4; C.r2 = a.r2
    build(a.o)
```

```python
import sys, argparse, struct

NAME = "parallel_sum__gqa_block_cached__dense_activation_squared_relu__decode"
KN = NAME + "_kernel"

WS_TICK = 0x000000
WS_EPOCH= 0x0F0000
WS_QP   = 0x100000
WS_P1   = 0x300000
WS_Y    = 0x400000
WS_YM   = 0x500000
WS_STAMP= 0x800000
WS_SIZE = 0x1000000
L_XN  = 0
L_QPL = 2048
L_HPL = 10240
L_QL  = 18432
L_HL  = 18944
L_CNT = 19968
L_SP  = 20480
L_ST  = 28672
L_OL  = 28928
L_WT  = 30720
LDS_BYTES = 63488

LOG2E = 1.4426950408889634
OOB = "0x7f000000"

class Cfg:
    spin_max = 200000
    win = 8
    sleepg = 16
    stamps = False
    pvdot = False
    early = False
    early_n = 4
    tagmask = 15
    pipe = False
    gap = 6
    dbgst = False
    qmap = 2
    kpol = 'nt'; vpol = 'nt'
    kx = True
    r4 = 64; r2 = 24
C = Cfg()

class G:
    def __init__(s):
        s.o = []; s.nl = 0
    def __call__(s, t):
        for line in t.strip("\n").split("\n"):
            line = line.strip()
            s.o.append(line if line.endswith(":") else "    " + line)
    def label(s, base):
        s.nl += 1
        return f"L_{base}_{s.nl}"
    def stamp(s, k):
        if C.stamps: s(f"s_memrealtime s[{64+2*k}:{65+2*k}]")
    def dstamp(s, k, vtmp, op="umax"):
        if not C.dbgst: return
        s("s_memrealtime s[76:77]")
        s("s_mov_b64 s[78:79], exec")
        s("s_waitcnt lgkmcnt(0)")
        s("s_mov_b64 exec, 1")
        s(f"v_mov_b32 v{vtmp}, {4*k}")
        val = "s76" if op == "umax" else None
        if op == "umax":
            s(f"v_mov_b32 v{vtmp+1}, s76")
        else:
            s("s_not_b32 s76, s76")
            s(f"v_mov_b32 v{vtmp+1}, s76")
        s(f"global_atomic_umax v{vtmp}, v{vtmp+1}, s[26:27] sc1")
        s("s_mov_b64 exec, s[78:79]")
    def text(s): return "\n".join(s.o) + "\n"

def f2u(x): return struct.unpack("<I", struct.pack("<f", x))[0]
def fx(x): return f"0x{f2u(x):08x}"

def bf16r(g, dst, src):
    g(f"v_cvt_pk_bf16_f32 v{dst}, v{src}, v{src}")
    g(f"v_and_b32 v{dst}, 0xffff0000, v{dst}")

def multi_xswap(g, regs, tmps, which, op="v_add_f32"):
    for v, t in zip(regs, tmps): g(f"v_mov_b32 v{t}, v{v}")
    g("s_nop 1")
    for v, t in zip(regs, tmps): g(f"v_permlane{which}_swap_b32 v{v}, v{t}")
    g("s_nop 1")
    for v, t in zip(regs, tmps): g(f"{op} v{v}, v{v}, v{t}")

DPPF = "row_mask:0xf bank_mask:0xf"
def row_allreduce(g, regs, op):
    for ctrl in ("row_ror:8", "row_half_mirror", "quad_perm:[3,2,1,0]", "quad_perm:[1,0,3,2]"):
        if len(regs) < 3: g("s_nop 1")
        for v in regs: g(f"{op}_dpp v{v}, v{v}, v{v} {ctrl} {DPPF}")

def srd(g, s, lo, size):
    g(f"s_mov_b32 s{s}, s{lo}\ns_mov_b32 s{s+1}, s{lo+1}\ns_mov_b32 s{s+2}, {size}\ns_mov_b32 s{s+3}, 0x20000")

def stamp_store(g, swave, ks, only_wave):
    if C.dbgst:
        l = g.label("st")
        g("s_waitcnt lgkmcnt(0)")
        g(f"s_cmp_eq_u32 {swave}, {only_wave}")
        g(f"s_cbranch_scc0 {l}")
        g("s_mov_b64 exec, 1")
        for k in ks:
            l2 = g.label("sk")
            g(f"s_cmp_eq_u32 s{64+2*k}, 0")
            g(f"s_cbranch_scc1 {l2}")
            g(f"v_mov_b32 v40, {4*k}")
            g(f"v_mov_b32 v41, s{64+2*k}")
            g("global_atomic_umax v40, v41, s[26:27] sc1")
            if k == 0:
                g(f"s_not_b32 s60, s{64+2*k}")
                g(f"v_mov_b32 v42, s60")
                g(f"global_atomic_umax v40, v42, s[26:27] offset:60 sc1")
            g("s_nop 1")
            g(f"{l2}:")
        g(f"{l}:")
        return
    l = g.label("st")
    g("s_waitcnt lgkmcnt(0)")
    g(f"s_cmp_eq_u32 {swave}, {only_wave}")
    g(f"s_cbranch_scc0 {l}")
    g("s_lshl_b32 s60, s2, 6")
    g(f"s_add_u32 s60, s60, {WS_STAMP}")
    g("s_add_u32 s62, s28, s60\ns_addc_u32 s63, s29, 0")
    g("s_mov_b64 exec, 1")
    g("v_mov_b32 v40, 0")
    for k in ks:
        g(f"v_mov_b32 v41, s{64+2*k}")
        g(f"global_store_dword v40, v41, s[62:63] offset:{4*k}")
        g("s_nop 1")
    g("s_waitcnt vmcnt(0)")
    g(f"{l}:")

TAG = 170
def tagw(g, regs):
    for r in regs: g(f"v_bfi_b32 v{r}, s95, v{TAG}, v{r}")

def spin_tail(g, lp, dn, sleep):
    g("s_add_u32 s58, s58, 1")
    g(f"s_cbranch_vccz {dn}")
    g(f"s_cmp_lt_u32 s58, {C.spin_max}")
    g(f"s_cbranch_scc0 {dn}")
    if sleep: g(f"s_sleep {sleep}")
    g(f"s_branch {lp}")
    g(f"{dn}:")

def tagcheck(g, regs, t0, t1):
    g(f"v_xor_b32 v{t0}, v{regs[0]}, v{TAG}")
    rest = regs[1:]
    while rest:
        if len(rest) >= 2:
            g(f"v_xor_b32 v{t1}, v{rest[0]}, v{TAG}")
            g(f"v_xor_b32 v{t1+1}, v{rest[1]}, v{TAG}")
            g(f"v_or3_b32 v{t0}, v{t0}, v{t1}, v{t1+1}")
            rest = rest[2:]
        else:
            g(f"v_xor_b32 v{t1}, v{rest[0]}, v{TAG}")
            g(f"v_or_b32 v{t0}, v{t0}, v{t1}")
            rest = rest[1:]
    g(f"v_and_b32 v{t0}, {C.tagmask}, v{t0}")
    g(f"v_cmp_ne_u32 vcc, 0, v{t0}")

def poll_tag(g, loads, regs, name, tmp=126, sleep=1):
    lp = g.label("poll"+name); dn = g.label("pdone"+name)
    g("s_mov_b32 s58, 0")
    g(f"{lp}:")
    loads()
    g("s_waitcnt vmcnt(0)")
    tagcheck(g, regs, tmp, tmp+1)
    spin_tail(g, lp, dn, sleep)

def poll_pipe(g, loads, nload, sets, work, name, tmp, gap):
    nreg = loads.nreg
    K = len(sets)
    lp = g.label("pp"+name); dn = g.label("ppd"+name)
    done = [g.label(f"ppk{name}{k}") for k in range(K)]
    g("s_mov_b32 s58, 0")
    for k in range(K):
        loads(sets[k])
        if k < K-1 and gap: g(f"s_sleep {gap}")
    g(f"{lp}:")
    for k in range(K):
        g(f"s_waitcnt vmcnt({nload*(K-1)})")
        tagcheck(g, list(range(sets[k], sets[k]+nreg)), tmp, tmp+1)
        g(f"s_cbranch_vccz {done[k]}")
        loads(sets[k])
    g("s_add_u32 s58, s58, 1")
    g(f"s_cmp_lt_u32 s58, {C.spin_max}")
    g(f"s_cbranch_scc1 {lp}")
    g("s_waitcnt vmcnt(0)")
    for k in range(K):
        g(f"{done[k]}:")
        for r in range(nreg): g(f"v_mov_b32 v{work+r}, v{sets[k]+r}")
        if k < K-1: g(f"s_branch {dn}")
    g(f"{dn}:")

def lds_arrive_wait(g, idx, n):
    lp = g.label("lw")
    g(f"v_mov_b32 v173, {L_CNT + 4*idx}")
    g("v_mov_b32 v174, 1")
    g("s_mov_b64 exec, 1")
    g("ds_add_u32 v173, v174")
    g(f"{lp}:")
    g("ds_read_b32 v174, v173")
    g("s_waitcnt lgkmcnt(0)")
    g("v_readfirstlane_b32 s59, v174")
    g(f"s_cmp_lt_u32 s59, {n}")
    g(f"s_cbranch_scc1 {lp}")
    g("s_mov_b64 exec, -1")

def diag_mfma(g, vAaddr, imm_bp, imm_j, nj, Ws, Ds, vA, masks, lds_base):
    raw = vA
    for j in range(nj):
        for bp in range(2):
            g(f"ds_read_b32 v{raw+2*j+bp}, v{vAaddr} offset:{lds_base + bp*imm_bp + j*imm_j}")
    op = vA + 2*nj
    n = 0
    for j in range(nj):
        for bp in range(2):
            g(f"s_waitcnt lgkmcnt({min(15, 2*nj-1-n)})")
            o = op + 4*(n % 2)
            for q in range(4): g(f"v_and_b32 v{o+q}, v{masks+q}, v{raw+2*j+bp}")
            g("s_nop 1")
            for W, D in zip(Ws, Ds):
                c = "0" if j == 0 else f"v[{D+4*bp}:{D+4*bp+3}]"
                g(f"v_mfma_f32_16x16x32_bf16 v[{D+4*bp}:{D+4*bp+3}], v[{o}:{o+3}], v[{W+4*j}:{W+4*j+3}], {c}")
            n += 1
    g("s_nop 7")

def streaming(g):
    LPT = 16; UB = 4096; NU = 512; NW = 8
    vL16, vTk, vZero, vN, vM, vL = 1, 3, 4, 5, 6, 7
    vAcc = 8; vQ = 16; vS = 20; vU = 36; vK = 48; vV = 112; vKx = 176
    vOffA = 44; vC = 2; vNinf = 240 if C.kx else 176
    vOffB = vNinf + 1
    NSTAT = 3 if C.kx else 2
    g("s_and_b32 s34, s3, 1")
    g("s_lshl_b32 s35, s32, 1")
    g("s_add_u32 s35, s35, s34")
    g("s_lshl_b32 s52, s35, 5")
    g("s_add_u32 s52, s52, s30")
    g("s_lshr_b32 s53, s3, 1")
    g("s_lshl_b32 s54, s33, 1")
    g("s_add_u32 s53, s53, s54")
    g("s_lshl_b32 s54, s52, 21")
    g(f"v_and_b32 v{vC}, 15, v1")
    g(f"v_lshlrev_b32 v{vL16}, 4, v1")
    g("s_lshl_b32 s47, s53, 14")
    def setoff(base, sreg_or_none, add=0, frm=None):
        if frm is None:
            g(f"v_add_u32 v{base}, {sreg_or_none}, v{vL16}")
        else:
            g(f"v_add_u32 v{base}, {add}, v{frm}")
        for k in range(1, 4): g(f"v_add_u32 v{base+k}, {4096*k}, v{base}")
    setoff(vOffA, "s47")
    setoff(vOffB, None, NW*4*UB, vOffA)
    g("s_mov_b32 s43, 0xffff0000")
    g("s_mov_b32 s34, 0x200000\ns_mov_b32 s35, 0x20000\ns_mov_b32 s38, 0x200000\ns_mov_b32 s39, 0x20000")
    g("s_lshl_b32 s55, s52, 8")
    lz = g.label("z")
    g("s_cmp_lg_u32 s3, 0")
    g(f"s_cbranch_scc1 {lz}")
    g(f"v_mov_b32 v36, {L_CNT}")
    for k in range(4): g(f"v_mov_b32 v{48+k}, 0")
    g("ds_write_b128 v36, v[48:51]")
    g("ds_write_b128 v36, v[48:51] offset:16")
    g(f"{lz}:")
    g("s_waitcnt lgkmcnt(0)")
    g("s_add_u32 s32, s6, s54\ns_addc_u32 s33, s7, 0")
    g("s_add_u32 s36, s8, s54\ns_addc_u32 s37, s9, 0")
    g("s_add_u32 s44, s28, s55\ns_addc_u32 s45, s29, 0")
    if WS_TICK: g(f"s_add_u32 s44, s44, {WS_TICK}\ns_addc_u32 s45, s45, 0")
    if not C.early: g("s_barrier")
    def kload(j, base, off): g(f"buffer_load_dwordx4 v[{base+4*j}:{base+4*j+3}], v{off+j//4}, s[32:35], 0 offen offset:{(j%4)*1024} {C.kpol}")
    def vload(j, off): g(f"buffer_load_dwordx4 v[{vV+4*j}:{vV+4*j+3}], v{off+j//4}, s[36:39], 0 offen offset:{(j%4)*1024} {C.vpol}")
    npre = 3*LPT if C.kx else 2*LPT
    for n in range(npre):
        if C.early and n == C.early_n: g("s_barrier")
        if n >= C.win: g(f"s_waitcnt vmcnt({C.win-1})")
        if n < LPT: kload(n, vK, vOffA)
        elif n < 2*LPT: vload(n-LPT, vOffA)
        else: kload(n-2*LPT, vKx, vOffB)
    g.stamp(1)
    g(f"v_mov_b32 v{vZero}, 0\nv_mov_b32 v{vN}, 4\nv_mov_b32 v{vM}, 0xff800000\nv_mov_b32 v{vL}, 0")
    g(f"v_mov_b32 v{vNinf}, 0xff800000")
    for k in range(8): g(f"v_mov_b32 v{vAcc+k}, 0")
    g("s_mov_b32 s48, 0xcccccccc\ns_mov_b32 s49, 0xcccccccc\ns_mov_b32 s50, 0xaaaaaaaa\ns_mov_b32 s51, 0xaaaaaaaa")
    g(f"v_and_b32 v36, 0xf0, v{vL16}")
    g("s_and_b32 s54, s3, 1")
    g("s_lshl_b32 s54, s54, 8")
    g("v_add_u32 v36, s54, v36")
    g("s_mov_b32 s60, 16")
    g("s_mov_b32 s61, 4")
    g("s_barrier")
    g(f"ds_read_b128 v[{vQ}:{vQ+3}], v36 offset:{L_QL}")
    g("s_waitcnt lgkmcnt(0)")
    g.stamp(2)

    def atomic():
        g("s_mov_b64 exec, 1")
        g(f"global_atomic_add v{vTk}, v{vZero}, v{vN}, s[44:45] sc0 sc1")
        g("s_mov_b64 exec, -1")
    def kphase(kreg, wait, refill):
        for j in range(LPT):
            w = wait(j)
            if w is not None: g(f"s_waitcnt vmcnt({w})")
            k = kreg + 4*j
            g(f"v_dot2_f32_bf16 v{vS+j}, v{k}, v{vQ}, 0")
            for t in range(1, 4): g(f"v_dot2_f32_bf16 v{vS+j}, v{k+t}, v{vQ+t}, v{vS+j}")
            if refill is not None: kload(j, kreg, refill)
        if refill is None: g("s_nop 1")
    vP = vS+3
    def softmax(mask):
        for j in range(8):
            g(f"v_add_f32_dpp v{vS+j}, v{vS+j}, v{vS+j} row_ror:8 row_mask:0xf bank_mask:0x3")
            g(f"v_add_f32_dpp v{vS+j}, v{vS+j+8}, v{vS+j+8} row_ror:8 row_mask:0xf bank_mask:0xc")
        for j in range(4):
            g(f"v_add_f32_dpp v{vS+j}, v{vS+j}, v{vS+j} row_half_mirror row_mask:0xf bank_mask:0x5")
            g(f"v_add_f32_dpp v{vS+j}, v{vS+j+4}, v{vS+j+4} row_half_mirror row_mask:0xf bank_mask:0xa")
        u0, w0, u1, w1 = vU, vU+1, vU+2, vU+3
        g(f"v_add_f32_dpp v{u0}, v{vS+0}, v{vS+0} quad_perm:[3,2,1,0] {DPPF}")
        g(f"v_add_f32_dpp v{w0}, v{vS+2}, v{vS+2} quad_perm:[3,2,1,0] {DPPF}")
        g(f"v_add_f32_dpp v{u1}, v{vS+1}, v{vS+1} quad_perm:[3,2,1,0] {DPPF}")
        g(f"v_add_f32_dpp v{w1}, v{vS+3}, v{vS+3} quad_perm:[3,2,1,0] {DPPF}")
        if mask: g(f"v_cmp_gt_u32 vcc, s60, v{vC}")
        g(f"v_cndmask_b32 v{vS+0}, v{u0}, v{w0}, s[48:49]")
        g(f"v_cndmask_b32 v{vS+1}, v{u1}, v{w1}, s[48:49]")
        g("s_nop 1")
        g(f"v_add_f32_dpp v{u0}, v{vS+0}, v{vS+0} quad_perm:[1,0,3,2] {DPPF}")
        g(f"v_add_f32_dpp v{w0}, v{vS+1}, v{vS+1} quad_perm:[1,0,3,2] {DPPF}")
        sc = vS
        g(f"v_cndmask_b32 v{sc}, v{u0}, v{w0}, s[50:51]")
        g(f"v_cvt_pk_bf16_f32 v{sc}, v{sc}, v{sc}")
        g(f"v_and_b32 v{sc}, s43, v{sc}")
        g(f"v_mul_f32 v{sc}, {fx(128**-0.5)}, v{sc}")
        g(f"v_cvt_pk_bf16_f32 v{sc}, v{sc}, v{sc}")
        g(f"v_and_b32 v{sc}, s43, v{sc}")
        if mask: g(f"v_cndmask_b32 v{sc}, v{vNinf}, v{sc}, vcc")
        mx = vS+1; al = vS+2
        g(f"v_max_f32 v{mx}, v{sc}, v{vM}")
        for ctrl in ("row_ror:8", "row_half_mirror", "quad_perm:[3,2,1,0]", "quad_perm:[1,0,3,2]"):
            g("s_nop 1")
            g(f"v_max_f32_dpp v{mx}, v{mx}, v{mx} {ctrl} {DPPF}")
        g(f"v_sub_f32 v{al}, v{vM}, v{mx}")
        g(f"v_sub_f32 v{vP}, v{sc}, v{mx}")
        g(f"v_mul_f32 v{al}, {fx(LOG2E)}, v{al}")
        g(f"v_mul_f32 v{vP}, {fx(LOG2E)}, v{vP}")
        g(f"v_exp_f32 v{al}, v{al}")
        g(f"v_exp_f32 v{vP}, v{vP}")
        g(f"v_mov_b32 v{vM}, v{mx}")
        if C.pvdot:
            g(f"v_cvt_pk_bf16_f32 v{vS+5}, v{vZero}, v{vP}")
            g(f"v_cvt_pk_bf16_f32 v{vS+4}, v{vP}, v{vZero}")
            g(f"v_fma_f32 v{vL}, v{vL}, v{al}, v{vS+5}")
        else:
            g(f"v_fma_f32 v{vL}, v{vL}, v{al}, v{vP}")
        for k in range(8): g(f"v_mul_f32 v{vAcc+k}, v{vAcc+k}, v{al}")
    def vphase(wait, refill):
        for j in range(LPT):
            g(f"s_waitcnt vmcnt({wait})")
            v = vV + 4*j
            if C.pvdot:
                for t in range(4):
                    g(f"v_dot2c_f32_bf16_dpp v{vAcc+2*t}, v{vS+4}, v{v+t} row_newbcast:{j} {DPPF}")
                    g(f"v_dot2c_f32_bf16_dpp v{vAcc+2*t+1}, v{vS+5}, v{v+t} row_newbcast:{j} {DPPF}")
                vload(j, refill)
                continue
            for t in range(4):
                g(f"v_lshlrev_b32 v{vU+2*t}, 16, v{v+t}")
                g(f"v_and_b32 v{vU+2*t+1}, s43, v{v+t}")
            vload(j, refill)
            for k in range(8):
                g(f"v_fmac_f32_dpp v{vAcc+k}, v{vP}, v{vU+k} row_newbcast:{j} {DPPF}")

    if C.kx:
        setoff(vOffA, None, NW*4*UB, vOffB)
        kphase(vK, lambda j: 47, vOffA)
        softmax(False)
        vphase(47, vOffB)
        atomic()
        kphase(vKx, lambda j: 33 if j == 0 else None, None)
        softmax(False)
        vphase(16, vOffA)
        g("s_mov_b32 s62, 16")
        g("s_waitcnt vmcnt(16)")
        g("s_branch L_top2")
    else:
        g(f"s_lshl_b32 s46, s53, 2")
        g(f"s_add_u32 s46, s46, {NW*4}")
        g("s_mov_b32 s62, 16")
        g("s_branch L_entry")
    g("L_top:")
    g(f"s_waitcnt vmcnt({2*LPT})")
    g("L_top2:")
    g(f"v_readfirstlane_b32 s46, v{vTk}")
    g(f"s_add_u32 s46, s46, {NSTAT*NW*4}")
    g("L_entry:")
    g("s_mov_b32 s60, s62")
    g("s_add_u32 s47, s46, s61")
    g(f"s_min_u32 s52, s47, {NU}")
    g("s_sub_u32 s62, s52, s46")
    g("s_lshl_b32 s62, s62, 2")
    g("s_lshl_b32 s52, s52, 12")
    g(f"s_cmp_ge_u32 s46, {NU}")
    g("s_cselect_b32 s52, 0, s52")
    g("s_mov_b32 s34, s52")
    g("s_mov_b32 s38, s52")
    g("s_mov_b32 s61, 1")
    g(f"s_cmp_lt_u32 s47, {NU-C.r2}")
    g("s_cselect_b32 s61, 2, s61")
    g(f"s_cmp_lt_u32 s47, {NU-C.r4}")
    g("s_cselect_b32 s61, 4, s61")
    g(f"v_mov_b32 v{vN}, s61")
    atomic()
    g("s_lshl_b32 s47, s46, 12")
    setoff(vOffA, "s47")
    kphase(vK, lambda j: 32, vOffA)
    softmax(True)
    vphase(32, vOffA)
    g(f"s_cmp_lt_u32 s46, {NU}")
    g("s_cbranch_scc1 L_top")
    g.stamp(3)
    g(f"v_lshlrev_b32 v45, 1, v{vL16}")
    g("s_lshl_b32 s54, s3, 11")
    g("v_add_u32 v45, s54, v45")
    g(f"ds_write_b128 v45, v[{vAcc}:{vAcc+3}] offset:{L_SP}")
    g(f"ds_write_b128 v45, v[{vAcc+4}:{vAcc+7}] offset:{L_SP+16}")
    row_allreduce(g, [vL], "v_add_f32")
    g(f"v_lshrrev_b32 v46, 8, v{vL16}")
    g("v_lshlrev_b32 v46, 3, v46")
    g("s_lshl_b32 s54, s3, 5")
    g("v_add_u32 v46, s54, v46")
    g("s_mov_b32 exec_lo, 0x00010001\ns_mov_b32 exec_hi, 0x00010001")
    g(f"ds_write_b64 v46, v[{vM}:{vM+1}] offset:{L_ST}")
    g("s_mov_b64 exec, -1")
    g("s_waitcnt lgkmcnt(0)")
    g("s_barrier")
    if C.stamps: stamp_store(g, "s3", range(0, 4), only_wave=0)
    g("s_endpgm")
    return vOffB + 4

def aux(g):
    g("s_sub_u32 s34, s3, 4")
    vLane, vC, vG, vHalf = 1, 2, 3, 12
    MK = 104
    g(f"v_and_b32 v{vC}, 15, v{vLane}")
    g(f"v_lshrrev_b32 v{vG}, 4, v{vLane}")
    g(f"v_lshlrev_b32 v11, 4, v{vC}")
    g("s_mul_i32 s52, s34, 1280")
    g("s_mul_i32 s53, s31, 160")
    g("s_add_u32 s53, s53, s52")
    g(f"v_cmp_gt_u32 vcc, 40, v{vLane}")
    g(f"v_lshlrev_b32 v9, 5, v{vLane}")
    g("v_add_u32 v9, s52, v9")
    g(f"v_lshlrev_b32 v15, 2, v{vLane}")
    g("v_add_u32 v15, s53, v15")
    g(f"v_mov_b32 v13, {OOB}")
    g("v_cndmask_b32 v9, v13, v9, vcc")
    g("v_cndmask_b32 v15, v13, v15, vcc")
    g(f"v_lshlrev_b32 v10, 13, v{vG}")
    g("v_add_u32 v10, v10, v11")
    g("s_mul_i32 s35, s31, 80")
    g("s_mul_i32 s52, s34, 20")
    g("s_add_u32 s35, s35, s52")
    g("s_lshl_b32 s52, s35, 13")
    g("s_lshl_b32 s53, s30, 8")
    g("s_add_u32 s52, s52, s53")
    g("s_mov_b32 s42, 5120\ns_mov_b32 s43, 0x20000\ns_mov_b32 s46, 5242880\ns_mov_b32 s47, 0x20000")
    g("s_waitcnt lgkmcnt(0)")
    g("s_mov_b32 s40, s4\ns_mov_b32 s41, s5")
    X = 16
    g(f"buffer_load_dwordx4 v[{X}:{X+3}], v9, s[40:43], 0 offen")
    g(f"buffer_load_dwordx4 v[{X+4}:{X+7}], v9, s[40:43], 0 offen offset:16")
    g(f"buffer_load_dword v{X+8}, v15, s[40:43], 0 offen")
    g("s_mov_b32 s44, s10\ns_mov_b32 s45, s11")
    WQ = 36; W1 = 56; B1R = 76
    for j in range(5):
        g(f"buffer_load_dwordx4 v[{WQ+4*j}:{WQ+4*j+3}], v10, s[44:47], s52 offen nt")
        if j < 4: g("s_add_u32 s52, s52, 32768")
    g(f"s_load_dword s96, s[28:29], {WS_EPOCH}")
    srd(g, 36, 28, WS_SIZE)
    g("s_lshl_b32 s54, s32, 6")
    g("s_add_u32 s54, s54, s30")
    g("s_lshl_b32 s54, s54, 8")
    if WS_TICK: g(f"s_add_u32 s54, s54, {WS_TICK}")
    g("s_cmp_lg_u32 s33, 0")
    g(f"s_cselect_b32 s54, {OOB}, s54")
    g("s_cmp_lg_u32 s34, 2")
    g(f"s_cselect_b32 s54, {OOB}, s54")
    g(f"v_lshlrev_b32 v171, 13, v{vLane}")
    g(f"v_cmp_gt_u32 vcc, 2, v{vLane}")
    g(f"v_mov_b32 v172, {OOB}")
    g("v_add_u32 v171, s54, v171")
    g("v_cndmask_b32 v171, v172, v171, vcc")
    g("v_mov_b32 v172, 0")
    g("buffer_store_dword v172, v171, s[36:39], 0 offen sc1")
    NCLR = 1
    g("s_barrier")
    g(f"v_lshlrev_b32 v8, 4, v{vLane}")
    g(f"s_mov_b32 s95, {C.tagmask}")
    g("s_mov_b32 s97, 255\ns_mov_b32 s98, 255\ns_mov_b32 s99, 0\ns_mov_b32 s62, 255")
    g("s_sub_u32 s52, s31, 1")
    g("s_cmp_lt_u32 s31, 3\ns_cselect_b32 s97, s31, s97")
    g("s_cmp_eq_u32 s31, 4\ns_cselect_b32 s97, s52, s97")
    g("s_cmp_eq_u32 s31, 5\ns_cselect_b32 s97, s52, s97")
    g("s_mul_i32 s52, s30, 3")
    g("s_cmp_eq_u32 s31, 3\ns_cselect_b32 s98, 0, s98\ns_cselect_b32 s99, 2, s99\ns_cselect_b32 s62, s52, s62")
    g("s_add_u32 s52, s52, 1")
    g("s_cmp_eq_u32 s31, 6\ns_cselect_b32 s98, 2, s98\ns_cselect_b32 s99, 2, s99\ns_cselect_b32 s62, s52, s62")
    g("s_add_u32 s52, s52, 1")
    g("s_cmp_eq_u32 s31, 7\ns_cselect_b32 s98, 4, s98\ns_cselect_b32 s99, 1, s99\ns_cselect_b32 s62, s52, s62")
    g("s_lshl_b32 s52, s30, 2")
    g("s_lshl_b32 s53, s32, 1")
    g("s_add_u32 s52, s52, s53")
    g("s_lshl_b32 s52, s52, 2")
    g("s_add_u32 s52, s52, s33")
    g("s_lshl_b32 s52, s52, 10")
    g(f"s_add_u32 s57, s52, {WS_P1}")
    g("s_mul_i32 s56, s30, 5")
    g(f"v_and_b32 v100, 7, v{vLane}")
    g("v_lshrrev_b32 v101, 1, v100")
    g("v_and_b32 v100, 1, v100")
    g("v_lshlrev_b32 v100, 4, v100")
    g("v_mov_b32 v102, 0xffff")
    g("v_lshlrev_b32 v102, v100, v102")
    for q in range(4):
        g(f"v_cmp_eq_u32 vcc, {q}, v101")
        g("s_nop 1")
        g(f"v_cndmask_b32 v{MK+q}, 0, v102, vcc")
    g(f"v_lshrrev_b32 v{vHalf}, 3, v{vLane}")
    g(f"v_and_b32 v{vHalf}, 1, v{vHalf}")
    g(f"v_mul_u32_u24 v102, 320, v{vHalf}")
    g("s_mul_i32 s52, s34, 20")
    g(f"v_add_u32 v79, s52, v{vG}")
    g("v_lshlrev_b32 v79, 2, v79")
    g("v_add_u32 v102, v102, v79")
    g("s_mul_i32 s52, s34, 320")
    g(f"v_lshlrev_b32 v79, 3, v{vLane}")
    g("v_add_u32 v79, s52, v79")
    g("v_mov_b32 v90, 0x3f803f80")
    g("v_mov_b32 v91, 0\nv_mov_b32 v92, 0\nv_mov_b32 v93, 0\nv_mov_b32 v94, 0")
    g(f"v_lshrrev_b32 v100, 1, v{vG}")
    g("v_lshlrev_b32 v100, 9, v100")
    g(f"v_lshlrev_b32 v101, 5, v{vC}")
    g("v_add_u32 v100, v100, v101")
    g(f"v_and_b32 v101, 1, v{vG}")
    g("v_lshlrev_b32 v101, 4, v101")
    g("v_add_u32 v103, v100, v101")
    g(f"v_mul_u32_u24 v14, 1280, v{vG}")
    g("v_add_u32 v14, v14, v11")
    g(f"v_and_b32 v109, 31, v{vLane}")
    g("v_lshlrev_b32 v13, 4, v109")
    g(f"s_waitcnt vmcnt({5+NCLR})")
    g.stamp(4)
    for t in range(0, 8, 2):
        g(f"v_dot2c_f32_bf16 v91, v{X+t}, v90")
        g(f"v_dot2c_f32_bf16 v92, v{X+t}, v{X+t}")
        g(f"v_dot2c_f32_bf16 v93, v{X+t+1}, v90")
        g(f"v_dot2c_f32_bf16 v94, v{X+t+1}, v{X+t+1}")
    g(f"v_lshlrev_b32 v95, 16, v{X+8}")
    g(f"v_and_b32 v96, 0xffff0000, v{X+8}")
    g("s_nop 0")
    g("v_add_f32 v91, v91, v93")
    g("v_add_f32 v92, v92, v94")
    row_allreduce(g, [91, 92], "v_add_f32")
    multi_xswap(g, [91, 92], [93, 94], 16)
    multi_xswap(g, [91, 92], [93, 94], 32)
    g(f"v_mul_f32 v91, {fx(1/640)}, v91")
    g(f"v_mul_f32 v92, {fx(1/640)}, v92")
    g("v_fma_f32 v92, -v91, v91, v92")
    g("v_max_f32 v92, 0, v92")
    g("v_cvt_pk_bf16_f32 v91, v91, v92")
    g("v_and_b32 v92, 0xffff0000, v91")
    g("v_lshlrev_b32 v91, 16, v91")
    g(f"v_add_f32 v92, {fx(1e-5)}, v92")
    g("v_sub_f32 v95, v95, v91")
    g("v_sub_f32 v96, v96, v91")
    bf16r(g, 92, 92)
    g("v_cvt_pk_bf16_f32 v95, v95, v96")
    g("v_sqrt_f32 v92, v92")
    g("v_and_b32 v96, 0xffff0000, v95")
    g("v_lshlrev_b32 v95, 16, v95")
    bf16r(g, 92, 92)
    g("v_rcp_f32 v93, v92")
    g("s_nop 0")
    g("v_mul_f32 v97, v95, v93")
    g("v_mul_f32 v98, v96, v93")
    g("v_fma_f32 v99, -v97, v92, v95")
    g("v_fma_f32 v100, -v98, v92, v96")
    g("v_fma_f32 v97, v99, v93, v97")
    g("v_fma_f32 v98, v100, v93, v98")
    g("v_cvt_pk_bf16_f32 v99, v98, v98")
    g("v_cvt_pk_bf16_f32 v98, v97, v97")
    g("s_mov_b32 exec_hi, 0xff")
    g(f"ds_write_b64 v79, v[98:99] offset:{L_XN}")
    g("s_mov_b64 exec, -1")
    g("s_waitcnt lgkmcnt(0)")
    lds_arrive_wait(g, 0, 4)
    g(f"s_waitcnt vmcnt({NCLR})")
    g.stamp(14)
    DQ = 148; DH = 156
    diag_mfma(g, 102, 640, 16, 5, [WQ], [DQ], 108, MK, L_XN)
    g("s_lshl_b32 s52, s34, 11")
    g("v_add_u32 v100, s52, v103")
    g(f"ds_write_b128 v100, v[{DQ}:{DQ+3}] offset:{L_QPL}")
    g(f"ds_write_b128 v100, v[{DQ+4}:{DQ+7}] offset:{L_QPL+1024}")
    g("s_waitcnt vmcnt(0) lgkmcnt(0)")
    g("s_add_u32 s96, s96, 1")
    g(f"v_mov_b32 v{TAG}, s96")
    lds_arrive_wait(g, 1, 4)
    g.stamp(5)
    def sum4_lds(vaddr, R, base, stride=2048):
        for a2 in range(4):
            g(f"ds_read_b128 v[{R+4*a2}:{R+4*a2+3}], v{vaddr} offset:{base + a2*stride}")
        g("s_waitcnt lgkmcnt(0)")
        for k in range(4): g(f"v_add_f32 v{R+k}, v{R+k}, v{R+4+k}")
        for k in range(4): g(f"v_add_f32 v{R+8+k}, v{R+8+k}, v{R+12+k}")
        for k in range(4): g(f"v_add_f32 v{R+k}, v{R+k}, v{R+8+k}")
    g("s_lshl_b32 s52, s34, 9")
    g("v_add_u32 v15, s52, v13")
    g("s_lshl_b32 s100, s2, 12")
    g(f"s_add_u32 s100, s100, {WS_QP}")
    sum4_lds(15, 16, L_QPL)
    tagw(g, range(16, 20))
    g("s_mov_b32 exec_hi, 0")
    g("buffer_store_dwordx4 v[16:19], v15, s[36:39], s100 offen sc1")
    g("s_mov_b64 exec, -1")
    g.stamp(6)
    GQ = 112
    l_noq = g.label("noq")
    g("s_cmp_ge_u32 s34, 2")
    g(f"s_cbranch_scc1 {l_noq}")
    g("s_lshl_b32 s52, s30, 15")
    g("s_lshl_b32 s53, s32, 1")
    g("s_add_u32 s53, s53, s34")
    g("s_lshl_b32 s53, s53, 9")
    g("s_add_u32 s52, s52, s53")
    g(f"s_add_u32 s52, s52, {WS_QP}")
    g(f"s_sleep {C.sleepg}")
    g(f"v_lshlrev_b32 v{GQ+16}, 12, v{vLane}")
    g(f"v_add_u32 v{GQ+16}, 508, v{GQ+16}")
    g("s_mov_b64 exec, 0xff")
    def lightload(): g(f"buffer_load_dword v{GQ}, v{GQ+16}, s[36:39], s52 offen sc1")
    poll_tag(g, lightload, [GQ], "ql")
    g("s_mov_b64 exec, -1")
    g(f"v_lshrrev_b32 v{GQ+16}, 5, v{vLane}")
    g(f"v_lshlrev_b32 v{GQ+16}, 12, v{GQ+16}")
    g(f"v_add_u32 v{GQ+16}, v{GQ+16}, v13")
    def qloads():
        g("s_mov_b32 s53, s52")
        for t in range(4):
            g(f"buffer_load_dwordx4 v[{GQ+4*t}:{GQ+4*t+3}], v{GQ+16}, s[36:39], s53 offen sc1")
            if t < 3: g("s_add_u32 s53, s53, 8192")
    poll_tag(g, qloads, list(range(GQ, GQ+16)), "q", tmp=GQ+18)
    for k in range(4): g(f"v_add_f32 v{GQ+k}, v{GQ+k}, v{GQ+4+k}")
    for k in range(4): g(f"v_add_f32 v{GQ+8+k}, v{GQ+8+k}, v{GQ+12+k}")
    for k in range(4): g(f"v_add_f32 v{GQ+k}, v{GQ+k}, v{GQ+8+k}")
    multi_xswap(g, [GQ+k for k in range(4)], [GQ+4+k for k in range(4)], 32)
    g(f"v_cvt_pk_bf16_f32 v{GQ}, v{GQ}, v{GQ+1}")
    g(f"v_cvt_pk_bf16_f32 v{GQ+1}, v{GQ+2}, v{GQ+3}")
    g("v_lshrrev_b32 v17, 1, v13")
    g("s_lshl_b32 s52, s34, 8")
    g("v_add_u32 v17, s52, v17")
    g(f"ds_write_b64 v17, v[{GQ}:{GQ+1}] offset:{L_QL}")
    g("s_waitcnt lgkmcnt(0)")
    g(f"{l_noq}:")
    g.stamp(7)
    g("s_barrier")
    g.stamp(8)
    srd(g, 48, 16, 2211840)
    g(f"v_cmp_gt_u32 vcc, 7, v{vC}")
    g(f"v_mul_u32_u24 v78, 3456, v{vG}")
    g("v_add_u32 v78, v78, v11")
    g(f"v_mov_b32 v79, {OOB}")
    g("v_cndmask_b32 v78, v79, v78, vcc")
    g("s_mul_i32 s54, s35, 3456")
    g("s_mul_i32 s55, s30, 108")
    g("s_add_u32 s54, s54, s55")
    for j in range(5):
        g(f"buffer_load_dwordx4 v[{W1+4*j}:{W1+4*j+3}], v78, s[48:51], s54 offen nt")
        if j < 4: g("s_add_u32 s54, s54, 13824")
    g("s_waitcnt vmcnt(0)")
    diag_mfma(g, 102, 640, 16, 5, [W1], [DH], 108, MK, L_XN)
    g("s_lshl_b32 s52, s34, 11")
    g("v_add_u32 v100, s52, v103")
    g(f"ds_write_b128 v100, v[{DH}:{DH+3}] offset:{L_HPL}")
    g(f"ds_write_b128 v100, v[{DH+4}:{DH+7}] offset:{L_HPL+1024}")
    g("s_waitcnt lgkmcnt(0)")
    lds_arrive_wait(g, 4, 4)
    sum4_lds(15, 28, L_HPL)
    tagw(g, range(28, 32))
    g("s_lshl_b32 s52, s34, 8")
    g("v_add_u32 v100, s52, v13")
    g("s_add_u32 s52, s100, 2048")
    g("s_mov_b64 exec, 0xffff")
    g("buffer_store_dwordx4 v[28:31], v100, s[36:39], s52 offen sc1")
    g("s_mov_b64 exec, -1")
    WB = 16; SC = 48; DD = 80
    l_wo = g.label("wo"); l_b3 = g.label("b3")
    g("s_cmp_eq_u32 s99, 0")
    g(f"s_cbranch_scc1 {l_wo}")
    srd(g, 48, 18, 3456)
    g("s_mul_i32 s52, s30, 108")
    g(f"v_lshlrev_b32 v15, 3, v{vC}")
    g("v_add_u32 v15, s52, v15")
    g(f"buffer_load_dwordx2 v[{B1R}:{B1R+1}], v15, s[48:51], 0 offen")
    srd(g, 48, 20, 2211840)
    g("s_mul_i32 s52, s30, 54")
    g("s_lshl_b32 s53, s34, 4")
    g("s_add_u32 s52, s52, s53")
    g("s_mul_i32 s52, s52, 1280")
    g("s_lshl_b32 s54, s98, 8")
    g("s_add_u32 s52, s52, s54")
    g(f"v_add_u32 v78, s53, v{vG}")
    for jj in range(4):
        g(f"v_add_u32 v{88+jj}, s52, v14")
        g(f"v_cmp_gt_u32 vcc, {54-4*jj}, v78")
        g(f"v_mov_b32 v92, {OOB}")
        g("s_add_u32 s52, s52, 5120")
        g(f"v_cndmask_b32 v{88+jj}, v92, v{88+jj}, vcc")
    for jj in range(4):
        g(f"buffer_load_dwordx4 v[{WB+4*jj}:{WB+4*jj+3}], v{88+jj}, s[48:51], 0 offen nt")
    l_u1 = g.label("u1")
    g("s_cmp_lt_u32 s99, 2")
    g(f"s_cbranch_scc1 {l_u1}")
    for jj in range(4):
        g(f"buffer_load_dwordx4 v[{WB+16+4*jj}:{WB+16+4*jj+3}], v{88+jj}, s[48:51], 0 offen offset:256 nt")
    g(f"{l_u1}:")
    g("s_lshl_b32 s52, s30, 15")
    g("s_lshl_b32 s53, s34, 8")
    g("s_add_u32 s52, s52, s53")
    g(f"s_add_u32 s52, s52, {WS_QP+2048}")
    g(f"v_lshlrev_b32 v{GQ+16}, 12, v{vG}")
    g(f"v_add_u32 v{GQ+16}, v{GQ+16}, v11")
    def hloads():
        g(f"buffer_load_dwordx4 v[{GQ}:{GQ+3}], v{GQ+16}, s[36:39], s52 offen sc1")
        g("s_add_u32 s53, s52, 16384")
        g(f"buffer_load_dwordx4 v[{GQ+4}:{GQ+7}], v{GQ+16}, s[36:39], s53 offen sc1")
    poll_tag(g, hloads, list(range(GQ, GQ+8)), "h", tmp=GQ+18, sleep=4)
    for k in range(4): g(f"v_add_f32 v{GQ+k}, v{GQ+k}, v{GQ+4+k}")
    multi_xswap(g, [GQ+k for k in range(4)], [GQ+4+k for k in range(4)], 16)
    multi_xswap(g, [GQ+k for k in range(4)], [GQ+4+k for k in range(4)], 32)
    g(f"v_lshlrev_b32 v52, 16, v{B1R}\nv_and_b32 v53, 0xffff0000, v{B1R}\nv_lshlrev_b32 v54, 16, v{B1R+1}\nv_and_b32 v55, 0xffff0000, v{B1R+1}")
    for k in range(4): bf16r(g, GQ+k, GQ+k)
    for k in range(4): g(f"v_add_f32 v{GQ+k}, v{GQ+k}, v{52+k}")
    for k in range(4): bf16r(g, GQ+k, GQ+k)
    for k in range(4): g(f"v_max_f32 v{GQ+k}, 0, v{GQ+k}")
    for k in range(4): g(f"v_mul_f32 v{GQ+k}, v{GQ+k}, v{GQ+k}")
    for k in range(4): g(f"v_cvt_pk_bf16_f32 v{GQ+k}, v{GQ+k}, v{GQ+k}")
    g(f"v_lshlrev_b32 v52, 2, v{vC}")
    for k in range(4):
        g(f"v_cmp_gt_u32 vcc, {54-k}, v52")
        g("s_nop 1")
        g(f"v_cndmask_b32 v{GQ+k}, 0, v{GQ+k}, vcc")
    g("s_lshl_b32 s52, s34, 8")
    g("v_add_u32 v101, s52, v11")
    g("s_mov_b64 exec, 0xffff")
    g(f"ds_write_b128 v101, v[{GQ}:{GQ+3}] offset:{L_HL}")
    g("s_mov_b64 exec, -1")
    g("s_waitcnt lgkmcnt(0)")
    lds_arrive_wait(g, 2, 4)
    g(f"v_lshlrev_b32 v79, 8, v{vHalf}")
    g("v_lshlrev_b32 v78, 2, v78")
    g("v_add_u32 v78, v78, v79")
    g("s_waitcnt vmcnt(0)")
    DD2 = 92
    diag_mfma(g, 78, 512, 16, 4, [WB, WB+16], [DD, DD2], SC, MK, L_HL)
    g("s_lshl_b32 s52, s34, 11")
    g("v_add_u32 v100, s52, v103")
    g(f"ds_write_b128 v100, v[{DD}:{DD+3}] offset:{L_QPL}")
    g(f"ds_write_b128 v100, v[{DD+4}:{DD+7}] offset:{L_QPL+1024}")
    g(f"ds_write_b128 v100, v[{DD2}:{DD2+3}] offset:{L_HPL}")
    g(f"ds_write_b128 v100, v[{DD2+4}:{DD2+7}] offset:{L_HPL+1024}")
    g("s_waitcnt lgkmcnt(0)")
    lds_arrive_wait(g, 3, 4)
    g(f"v_lshrrev_b32 v108, 5, v{vLane}")
    g(f"v_mul_u32_u24 v110, {L_HPL-L_QPL}, v108")
    g(f"v_and_b32 v109, 31, v{vLane}")
    g("s_lshl_b32 s52, s34, 5")
    g("v_add_u32 v109, s52, v109")
    g("v_lshlrev_b32 v111, 2, v109")
    g("v_add_u32 v110, v110, v111")
    for a2 in range(4):
        for bb in range(4):
            g(f"ds_read_b32 v{112+4*a2+bb}, v110 offset:{L_QPL + a2*2048 + bb*512}")
    g("s_waitcnt lgkmcnt(0)")
    for k in range(4): g(f"v_add_f32 v{112+k}, v{112+k}, v{116+k}")
    for k in range(4): g(f"v_add_f32 v{120+k}, v{120+k}, v{124+k}")
    for k in range(4): g(f"v_add_f32 v{112+k}, v{112+k}, v{120+k}")
    tagw(g, range(112, 116))
    g("s_add_u32 s52, s56, s98")
    g("s_lshl_b32 s52, s52, 11")
    g(f"s_add_u32 s52, s52, {WS_YM}")
    g("v_lshlrev_b32 v110, 11, v108")
    g("v_lshlrev_b32 v111, 4, v109")
    g("v_add_u32 v110, v110, v111")
    g("s_cmp_lt_u32 s99, 2")
    g("s_cselect_b32 exec_hi, 0, -1")
    g("buffer_store_dwordx4 v[112:115], v110, s[36:39], s52 offen sc1")
    g("s_mov_b64 exec, -1")
    g("s_cmp_ge_u32 s62, 80")
    g(f"s_cbranch_scc1 {l_b3}")
    g("s_cmp_lg_u32 s34, 0")
    g(f"s_cbranch_scc1 {l_b3}")
    g("s_lshr_b32 s54, s62, 4")
    g("s_and_b32 s53, s62, 15")
    g("s_lshl_b32 s55, s54, 11")
    g("s_lshl_b32 s63, s53, 7")
    g("s_add_u32 s55, s55, s63")
    g("s_lshl_b32 s63, s62, 4")
    g(f"v_lshrrev_b32 v88, 3, v{vLane}")
    g(f"v_and_b32 v89, 7, v{vLane}")
    g("v_lshlrev_b32 v90, 4, v89")
    g("v_lshlrev_b32 v91, 1, v89")
    g("v_add_u32 v91, s63, v91")
    srd(g, 48, 22, 1280)
    g("buffer_load_ushort v94, v91, s[48:51], 0 offen")
    for k in range(4):
        g(f"buffer_load_ushort v{80+k}, v91, s[40:43], 0 offen offset:{1280*k}")
    g("v_mul_u32_u24 v93, 10240, v88")
    g("v_add_u32 v93, v93, v90")
    YR = 16
    def recloads(base):
        def f():
            g(f"s_add_u32 s52, s55, {base}")
            for t in range(4):
                g(f"buffer_load_dwordx4 v[{YR+4*t}:{YR+4*t+3}], v93, s[36:39], s52 offen sc1")
                if t < 3: g("s_add_u32 s52, s52, 81920")
        return f
    def red8(R, T):
        for t in range(1, 4):
            for k in range(4): g(f"v_add_f32 v{R+k}, v{R+k}, v{R+4*t+k}")
        g("s_nop 1")
        for k in range(4): g(f"v_add_f32_dpp v{R+k}, v{R+k}, v{R+k} row_ror:8 {DPPF}")
        multi_xswap(g, [R+k for k in range(4)], [T+k for k in range(4)], 16)
        multi_xswap(g, [R+k for k in range(4)], [T+k for k in range(4)], 32)
    poll_tag(g, recloads(WS_YM), list(range(YR, YR+16)), "ym", sleep=8)
    red8(YR, YR+4)
    for k in range(4): g(f"v_lshlrev_b32 v{80+k}, 16, v{80+k}")
    g("v_lshlrev_b32 v94, 16, v94")
    for k in range(4): bf16r(g, YR+k, YR+k)
    for k in range(4): g(f"v_add_f32 v{84+k}, v{YR+k}, v94")
    for k in range(4): bf16r(g, 84+k, 84+k)
    g(f"s_branch {l_b3}")
    g(f"{l_wo}:")
    srd(g, 48, 12, 5242880)
    g("s_lshl_b32 s52, s30, 7")
    g("s_mul_i32 s52, s52, 1280")
    g("s_lshl_b32 s53, s97, 8")
    g("s_add_u32 s52, s52, s53")
    g("s_lshl_b32 s53, s34, 6")
    g("s_add_u32 s52, s52, s53")
    g(f"v_lshrrev_b32 v78, 2, v{vLane}")
    g("v_mul_u32_u24 v78, 1280, v78")
    g(f"v_and_b32 v79, 3, v{vLane}")
    g("v_lshlrev_b32 v79, 4, v79")
    g("v_add_u32 v78, v78, v79")
    for r in range(8):
        g(f"buffer_load_dwordx4 v[{WB+4*r}:{WB+4*r+3}], v78, s[48:51], s52 offen nt")
        if r < 7: g(f"s_add_u32 s52, s52, {16*1280}")
    g("s_lshl_b32 s52, s34, 13")
    g("v_add_u32 v79, s52, v8")
    g("v_mov_b32 v88, 0\nv_mov_b32 v89, 0\nv_mov_b32 v90, 0\nv_mov_b32 v91, 0")
    g("s_mov_b64 exec, 0xffff")
    g(f"ds_write_b128 v8, v[88:91] offset:{L_OL+1024}")
    g("s_mov_b64 exec, -1")
    for r in range(8):
        g(f"s_waitcnt vmcnt({7-r})")
        g(f"ds_write_b128 v79, v[{WB+4*r}:{WB+4*r+3}] offset:{L_WT + r*1024}")
    g(f"v_lshlrev_b32 v78, 9, v{vG}")
    g(f"v_lshlrev_b32 v79, 1, v{vC}")
    g("v_add_u32 v78, v78, v79")
    g("v_add_u32 v78, s52, v78")
    g("s_waitcnt lgkmcnt(0)")
    for s_ in range(4):
        for t in range(2):
            for q in range(4):
                r = WB + (s_*2+t)*4 + q
                off = L_WT + s_*2048 + q*128 + t*32
                g(f"ds_read_u16 v{r}, v78 offset:{off}")
                g(f"ds_read_u16 v{112+t*4+q}, v78 offset:{off+64}")
        g("s_waitcnt lgkmcnt(0)")
        for t in range(2):
            for q in range(4):
                r = WB + (s_*2+t)*4 + q
                g(f"v_lshl_or_b32 v{r}, v{112+t*4+q}, 16, v{r}")
    g(f"v_lshlrev_b32 v78, 8, v{vC}")
    g(f"v_lshlrev_b32 v79, 4, v{vG}")
    g("v_add_u32 v78, v78, v79")
    g(f"v_cmp_gt_u32 vcc, 4, v{vC}")
    g("v_mov_b32 v79, 1024")
    g("s_nop 0")
    g("v_cndmask_b32 v78, v79, v78, vcc")
    g(f"{l_b3}:")
    g.stamp(9)
    g("s_barrier")
    g.stamp(10)
    l_t1 = g.label("t1")
    g("s_cmp_lg_u32 s34, 0")
    g(f"s_cbranch_scc1 {l_t1}")
    g(f"v_lshrrev_b32 v108, 5, v{vLane}")
    g("v_lshlrev_b32 v110, 11, v108")
    g("v_add_u32 v110, v110, v13")
    AC = 112; STt = 144
    g("v_lshlrev_b32 v160, 5, v108")
    for s_ in range(2):
        for r in range(0, 4, 2):
            p = s_*4+r
            g(f"ds_read_b128 v[{STt+2*p}:{STt+2*p+3}], v160 offset:{L_ST + s_*64 + r*8}")
    for s_ in range(2):
        for r in range(4):
            p = s_*4+r
            g(f"ds_read_b128 v[{AC+4*p}:{AC+4*p+3}], v110 offset:{L_SP + s_*4096 + r*512}")
    g("s_waitcnt lgkmcnt(8)")
    g(f"v_max3_f32 v161, v{STt}, v{STt+2}, v{STt+4}")
    g(f"v_max3_f32 v161, v161, v{STt+6}, v{STt+8}")
    g(f"v_max3_f32 v161, v161, v{STt+10}, v{STt+12}")
    g(f"v_max_f32 v161, v161, v{STt+14}")
    for p in range(8): g(f"v_sub_f32 v{STt+2*p}, v{STt+2*p}, v161")
    for p in range(8): g(f"v_mul_f32 v{STt+2*p}, {fx(LOG2E)}, v{STt+2*p}")
    for p in range(8): g(f"v_exp_f32 v{STt+2*p}, v{STt+2*p}")
    g("s_nop 0")
    g(f"v_mul_f32 v162, v{STt}, v{STt+1}")
    for p in range(1, 8): g(f"v_fmac_f32 v162, v{STt+2*p}, v{STt+2*p+1}")
    g("s_waitcnt lgkmcnt(0)")
    for k in range(4): g(f"v_mul_f32 v{164+k}, v{AC+k}, v{STt}")
    for p in range(1, 8):
        for k in range(4): g(f"v_fmac_f32 v{164+k}, v{AC+4*p+k}, v{STt+2*p}")
    tagw(g, range(164, 168))
    g("v_lshlrev_b32 v163, 12, v108")
    g("v_add_u32 v163, v163, v13")
    g("buffer_store_dwordx4 v[164:167], v163, s[36:39], s57 offen sc1")
    g("v_mov_b32 v168, v161\nv_mov_b32 v169, v162")
    tagw(g, [168, 169])
    g("s_mov_b32 exec_lo, 1\ns_mov_b32 exec_hi, 1")
    g("buffer_store_dwordx2 v[168:169], v163, s[36:39], s57 offen offset:512 sc1")
    g("s_mov_b64 exec, -1")
    g.stamp(11)
    g(f"{l_t1}:")
    l_notunit = g.label("notunit")
    g("s_cmp_ge_u32 s97, 5")
    g(f"s_cbranch_scc1 {l_notunit}")
    g(f"v_lshrrev_b32 v108, 5, v{vLane}")
    g("v_lshlrev_b32 v110, 10, v108")
    g("v_add_u32 v111, v110, v13")
    g("s_lshl_b32 s52, s30, 2")
    g("s_add_u32 s52, s52, s34")
    g("s_lshl_b32 s52, s52, 12")
    g(f"s_add_u32 s59, s52, {WS_P1}")
    O0, O1, S0, S1 = 112, 116, 120, 122
    def h1loads(B):
        g(f"buffer_load_dwordx4 v[{B}:{B+3}], v111, s[36:39], s59 offen sc1")
        g(f"buffer_load_dwordx4 v[{B+4}:{B+7}], v111, s[36:39], s59 offen offset:2048 sc1")
        g(f"buffer_load_dwordx2 v[{B+8}:{B+9}], v110, s[36:39], s59 offen offset:512 sc1")
        g(f"buffer_load_dwordx2 v[{B+10}:{B+11}], v110, s[36:39], s59 offen offset:2560 sc1")
    h1loads.nreg = 12
    if C.pipe:
        poll_pipe(g, h1loads, 4, [176, 188, 200], O0, "h1", 126, C.gap)
    else:
        poll_tag(g, lambda: h1loads(O0), list(range(O0, O0+12)), "h1", sleep=0)
    g.stamp(12)
    g(f"v_and_b32 v{S0}, 0xffffff00, v{S0}")
    g(f"v_and_b32 v{S1}, 0xffffff00, v{S1}")
    g(f"v_max_f32 v124, v{S0}, v{S1}")
    multi_xswap(g, [124], [125], 32, "v_max_f32")
    g(f"v_sub_f32 v{S0}, v{S0}, v124")
    g(f"v_sub_f32 v{S1}, v{S1}, v124")
    g(f"v_mul_f32 v{S0}, {fx(LOG2E)}, v{S0}")
    g(f"v_mul_f32 v{S1}, {fx(LOG2E)}, v{S1}")
    g(f"v_exp_f32 v{S0}, v{S0}")
    g(f"v_exp_f32 v{S1}, v{S1}")
    g("s_nop 0")
    g(f"v_mul_f32 v128, v{S0}, v{S0+1}")
    g(f"v_fmac_f32 v128, v{S1}, v{S1+1}")
    for k in range(4): g(f"v_mul_f32 v{129+k}, v{O0+k}, v{S0}")
    for k in range(4): g(f"v_fmac_f32 v{129+k}, v{O1+k}, v{S1}")
    multi_xswap(g, [128+k for k in range(5)], [134+k for k in range(5)], 32)
    g("v_rcp_f32 v133, v128")
    g("s_nop 0")
    for k in range(4): g(f"v_mul_f32 v{134+k}, v{129+k}, v133")
    for k in range(4): g(f"v_fma_f32 v{138+k}, -v{134+k}, v128, v{129+k}")
    for k in range(4): g(f"v_fma_f32 v{134+k}, v{138+k}, v133, v{134+k}")
    g("v_cvt_pk_bf16_f32 v140, v134, v135")
    g("v_cvt_pk_bf16_f32 v141, v136, v137")
    g("v_lshrrev_b32 v134, 1, v13")
    g("s_lshl_b32 s52, s34, 8")
    g("v_add_u32 v134, s52, v134")
    g(f"ds_write_b64 v134, v[140:141] offset:{L_OL}")
    g("s_add_u32 s52, s56, s97")
    g("s_lshl_b32 s52, s52, 11")
    g("s_lshl_b32 s53, s34, 9")
    g("s_add_u32 s52, s52, s53")
    g(f"s_add_u32 s52, s52, {WS_Y}")
    g("s_waitcnt lgkmcnt(0)")
    g("s_barrier")
    for s_ in range(4):
        g(f"ds_read_b128 v[{112+4*s_}:{112+4*s_+3}], v78 offset:{L_OL + s_*64}")
    for s_ in range(4):
        g(f"s_waitcnt lgkmcnt({3-s_})")
        for t in range(2):
            c = "0" if s_ == 0 else f"v[{DD+4*t}:{DD+4*t+3}]"
            B = WB + (s_*2+t)*4
            g(f"v_mfma_f32_16x16x32_bf16 v[{DD+4*t}:{DD+4*t+3}], v[{112+4*s_}:{112+4*s_+3}], v[{B}:{B+3}], {c}")
    g("s_nop 7")
    tagw(g, range(DD, DD+8))
    g("s_mov_b64 exec, 0xffff")
    g(f"buffer_store_dwordx4 v[{DD}:{DD+3}], v11, s[36:39], s52 offen sc1")
    g(f"buffer_store_dwordx4 v[{DD+4}:{DD+7}], v11, s[36:39], s52 offen offset:256 sc1")
    g("s_mov_b64 exec, -1")
    g.stamp(13)
    if C.stamps: stamp_store(g, "s3", range(4, 15), only_wave=4)
    g("s_endpgm")
    g(f"{l_notunit}:")
    g("s_cmp_lg_u32 s34, 0")
    g("s_cbranch_scc1 L_end")
    l_st = g.label("stonly")
    g("s_cmp_ge_u32 s62, 80")
    g(f"s_cbranch_scc1 {l_st}")
    def yloads(B):
        g(f"s_add_u32 s52, s55, {WS_Y}")
        for t in range(4):
            g(f"buffer_load_dwordx4 v[{B+4*t}:{B+4*t+3}], v93, s[36:39], s52 offen sc1")
            if t < 3: g("s_add_u32 s52, s52, 81920")
    yloads.nreg = 16
    if C.pipe:
        poll_pipe(g, yloads, 4, [176, 192, 208], YR, "y", 126, C.gap)
    else:
        poll_tag(g, recloads(WS_Y), list(range(YR, YR+16)), "y", sleep=0)
    g.stamp(12)
    red8(YR, YR+4)
    for k in range(4): bf16r(g, YR+k, YR+k)
    for k in range(4): g(f"v_add_f32 v{YR+k}, v{YR+k}, v{80+k}")
    for k in range(4): bf16r(g, YR+k, YR+k)
    for k in range(4): g(f"v_add_f32 v{YR+k}, v{YR+k}, v{84+k}")
    for k in range(4): g(f"v_cvt_pk_bf16_f32 v{YR+k}, v{YR+k}, v{YR+k}")
    srd(g, 48, 24, 5120)
    g("s_mov_b64 exec, 0xff")
    for k in range(4):
        g(f"buffer_store_short v{YR+k}, v91, s[48:51], 0 offen offset:{1280*k}")
    l_ep = g.label("ep")
    g("s_cmp_lg_u32 s62, 0")
    g(f"s_cbranch_scc1 {l_ep}")
    g("s_mov_b64 exec, 1")
    g(f"v_mov_b32 v92, {WS_EPOCH}")
    g(f"buffer_store_dword v{TAG}, v92, s[36:39], 0 offen sc1")
    g(f"{l_ep}:")
    g("s_mov_b64 exec, -1")
    g.stamp(13)
    g(f"{l_st}:")
    if C.stamps: stamp_store(g, "s3", range(4, 15), only_wave=4)
    g("s_endpgm")

def gen():
    g = G()
    g(f"{KN}:")
    g("s_cmp_ge_u32 s2, 256")
    g("s_cbranch_scc1 L_end")
    if C.dbgst:
        for k in range(15): g(f"s_mov_b32 s{64+2*k}, 0")
    g.stamp(0)
    g("s_load_dwordx16 s[4:19], s[0:1], 0")
    g("s_load_dwordx8 s[20:27], s[0:1], 64")
    g("s_load_dwordx2 s[28:29], s[0:1], 96")
    g("v_lshrrev_b32 v1, 6, v0")
    g("s_lshr_b32 s30, s2, 3")
    g("v_readfirstlane_b32 s3, v1")
    g("s_and_b32 s31, s2, 7")
    g("v_and_b32 v1, 63, v0")
    if C.qmap == 0:
        g("s_lshr_b32 s32, s31, 2")
        g("s_and_b32 s33, s31, 3")
    elif C.qmap == 1:
        g("s_bfe_u32 s32, s31, 0x10001")
        g("s_lshr_b32 s33, s31, 2")
        g("s_lshl_b32 s33, s33, 1")
        g("s_and_b32 s34, s31, 1")
        g("s_or_b32 s33, s33, s34")
    elif C.qmap == 2:
        g("s_lshr_b32 s32, s31, 1")
        g("s_xor_b32 s32, s32, s31")
        g("s_and_b32 s32, s32, 1")
        g("s_lshr_b32 s33, s31, 1")

    g("s_cmp_ge_u32 s3, 4")
    g("s_cbranch_scc1 L_aux")
    nv = streaming(g)
    g("L_aux:")
    aux(g)
    g("L_end:")
    g("s_endpgm")
    return g.text(), max(nv, 176)

HEADER = open("cdna_kernels/" + NAME + ".s.ref").read().split("; Override launch geometry")[0]

def build(path):
    body, nv = gen()
    nv = (nv + 3)//4*4
    assert nv <= 256
    txt = HEADER
    txt += "; Override launch geometry by editing the next line (default: block=256,\n"
    txt += f"; @launch grid=(256,1,1) block=(512,1,1) lds={LDS_BYTES}\n"
    txt += '.amdgcn_target "amdgcn-amd-amdhsa--gfx950"\n.text\n'
    txt += f".globl {KN}\n.p2align 8\n.type {KN},@function\n"
    txt += body
    txt += f""".section .rodata,"a"
.p2align 6
.amdhsa_kernel {KN}
  .amdhsa_next_free_vgpr {nv}
  .amdhsa_next_free_sgpr 102
  .amdhsa_accum_offset {nv}
  .amdhsa_group_segment_fixed_size 0
  .amdhsa_kernarg_size 104
  .amdhsa_user_sgpr_count 2
  .amdhsa_user_sgpr_kernarg_segment_ptr 1
  .amdhsa_system_sgpr_workgroup_id_x 1
.end_amdhsa_kernel
"""
    open(path, "w").write(txt)

if __name__ == "__main__":
    ap = argparse.ArgumentParser()
    ap.add_argument("-o", default="k.s")
    ap.add_argument("--stamps", action="store_true")
    ap.add_argument("--win", type=int, default=8)
    ap.add_argument("--sleepg", type=int, default=16)
    ap.add_argument("--kpol", default="nt")
    ap.add_argument("--vpol", default="nt")
    ap.add_argument("--nokx", action="store_true")
    ap.add_argument("--r4", type=int, default=0)
    ap.add_argument("--r2", type=int, default=0)
    ap.add_argument("--qmap", type=int, default=2)
    ap.add_argument("--dbgst", action="store_true")
    ap.add_argument("--pipe", action="store_true")
    ap.add_argument("--gap", type=int, default=6)
    ap.add_argument("--pvdot", action="store_true")
    ap.add_argument("--early", type=int, default=0)
    a = ap.parse_args()
    C.pvdot = a.pvdot; C.early = a.early > 0; C.early_n = a.early
    C.pipe = a.pipe; C.gap = a.gap
    C.dbgst = a.dbgst
    if a.dbgst: a.stamps = True
    C.qmap = a.qmap
    C.stamps = a.stamps; C.win = a.win; C.sleepg = a.sleepg
    C.kpol = a.kpol.replace("_"," "); C.vpol = a.vpol.replace("_"," ")
    C.kx = not a.nokx; C.r4 = a.r4; C.r2 = a.r2
    build(a.o)
```

```python
import sys, argparse, struct

NAME = "parallel_sum__gqa_block_cached__dense_activation_squared_relu__decode"
KN = NAME + "_kernel"

WS_TICK = 0x000000
WS_EPOCH= 0x0F0000
WS_QP   = 0x100000
WS_P1   = 0x300000
WS_Y    = 0x400000
WS_YM   = 0x500000
WS_STAMP= 0x800000
WS_SIZE = 0x1000000
L_XN  = 0
L_QPL = 2048
L_HPL = 10240
L_QL  = 18432
L_HL  = 18944
L_CNT = 19968
L_SP  = 20480
L_ST  = 28672
L_OL  = 28928
L_WT  = 30720
LDS_BYTES = 63488

LOG2E = 1.4426950408889634
OOB = "0x7f000000"

class Cfg:
    spin_max = 200000
    win = 8
    sleepg = 16
    stamps = False
    altmask = 0
    altk = 'nt'
    altv = 'nt'
    pvdot = False
    early = False
    early_n = 4
    tagmask = 15
    pipe = False
    gap = 6
    dbgst = False
    qmap = 2
    kpol = 'nt'; vpol = 'nt'
    kx = True
    r4 = 64; r2 = 24
C = Cfg()

class G:
    def __init__(s):
        s.o = []; s.nl = 0
    def __call__(s, t):
        for line in t.strip("\n").split("\n"):
            line = line.strip()
            s.o.append(line if line.endswith(":") else "    " + line)
    def label(s, base):
        s.nl += 1
        return f"L_{base}_{s.nl}"
    def stamp(s, k):
        if C.stamps: s(f"s_memrealtime s[{64+2*k}:{65+2*k}]")
    def dstamp(s, k, vtmp, op="umax"):
        if not C.dbgst: return
        s("s_memrealtime s[76:77]")
        s("s_mov_b64 s[78:79], exec")
        s("s_waitcnt lgkmcnt(0)")
        s("s_mov_b64 exec, 1")
        s(f"v_mov_b32 v{vtmp}, {4*k}")
        val = "s76" if op == "umax" else None
        if op == "umax":
            s(f"v_mov_b32 v{vtmp+1}, s76")
        else:
            s("s_not_b32 s76, s76")
            s(f"v_mov_b32 v{vtmp+1}, s76")
        s(f"global_atomic_umax v{vtmp}, v{vtmp+1}, s[26:27] sc1")
        s("s_mov_b64 exec, s[78:79]")
    def text(s): return "\n".join(s.o) + "\n"

def f2u(x): return struct.unpack("<I", struct.pack("<f", x))[0]
def fx(x): return f"0x{f2u(x):08x}"

def bf16r(g, dst, src):
    g(f"v_cvt_pk_bf16_f32 v{dst}, v{src}, v{src}")
    g(f"v_and_b32 v{dst}, 0xffff0000, v{dst}")

def multi_xswap(g, regs, tmps, which, op="v_add_f32"):
    for v, t in zip(regs, tmps): g(f"v_mov_b32 v{t}, v{v}")
    g("s_nop 1")
    for v, t in zip(regs, tmps): g(f"v_permlane{which}_swap_b32 v{v}, v{t}")
    g("s_nop 1")
    for v, t in zip(regs, tmps): g(f"{op} v{v}, v{v}, v{t}")

DPPF = "row_mask:0xf bank_mask:0xf"
def row_allreduce(g, regs, op):
    for ctrl in ("row_ror:8", "row_half_mirror", "quad_perm:[3,2,1,0]", "quad_perm:[1,0,3,2]"):
        if len(regs) < 3: g("s_nop 1")
        for v in regs: g(f"{op}_dpp v{v}, v{v}, v{v} {ctrl} {DPPF}")

def srd(g, s, lo, size):
    g(f"s_mov_b32 s{s}, s{lo}\ns_mov_b32 s{s+1}, s{lo+1}\ns_mov_b32 s{s+2}, {size}\ns_mov_b32 s{s+3}, 0x20000")

def stamp_store(g, swave, ks, only_wave):
    if C.dbgst:
        l = g.label("st")
        g("s_waitcnt lgkmcnt(0)")
        g(f"s_cmp_eq_u32 {swave}, {only_wave}")
        g(f"s_cbranch_scc0 {l}")
        g("s_mov_b64 exec, 1")
        for k in ks:
            l2 = g.label("sk")
            g(f"s_cmp_eq_u32 s{64+2*k}, 0")
            g(f"s_cbranch_scc1 {l2}")
            g(f"v_mov_b32 v40, {4*k}")
            g(f"v_mov_b32 v41, s{64+2*k}")
            g("global_atomic_umax v40, v41, s[26:27] sc1")
            if k == 0:
                g(f"s_not_b32 s60, s{64+2*k}")
                g(f"v_mov_b32 v42, s60")
                g(f"global_atomic_umax v40, v42, s[26:27] offset:60 sc1")
            g("s_nop 1")
            g(f"{l2}:")
        g(f"{l}:")
        return
    l = g.label("st")
    g("s_waitcnt lgkmcnt(0)")
    g(f"s_cmp_eq_u32 {swave}, {only_wave}")
    g(f"s_cbranch_scc0 {l}")
    g("s_lshl_b32 s60, s2, 6")
    g(f"s_add_u32 s60, s60, {WS_STAMP}")
    g("s_add_u32 s62, s28, s60\ns_addc_u32 s63, s29, 0")
    g("s_mov_b64 exec, 1")
    g("v_mov_b32 v40, 0")
    for k in ks:
        g(f"v_mov_b32 v41, s{64+2*k}")
        g(f"global_store_dword v40, v41, s[62:63] offset:{4*k}")
        g("s_nop 1")
    g("s_waitcnt vmcnt(0)")
    g(f"{l}:")

TAG = 170
def tagw(g, regs):
    for r in regs: g(f"v_bfi_b32 v{r}, s95, v{TAG}, v{r}")

def spin_tail(g, lp, dn, sleep):
    g("s_add_u32 s58, s58, 1")
    g(f"s_cbranch_vccz {dn}")
    g(f"s_cmp_lt_u32 s58, {C.spin_max}")
    g(f"s_cbranch_scc0 {dn}")
    if sleep: g(f"s_sleep {sleep}")
    g(f"s_branch {lp}")
    g(f"{dn}:")

def tagcheck(g, regs, t0, t1):
    g(f"v_xor_b32 v{t0}, v{regs[0]}, v{TAG}")
    rest = regs[1:]
    while rest:
        if len(rest) >= 2:
            g(f"v_xor_b32 v{t1}, v{rest[0]}, v{TAG}")
            g(f"v_xor_b32 v{t1+1}, v{rest[1]}, v{TAG}")
            g(f"v_or3_b32 v{t0}, v{t0}, v{t1}, v{t1+1}")
            rest = rest[2:]
        else:
            g(f"v_xor_b32 v{t1}, v{rest[0]}, v{TAG}")
            g(f"v_or_b32 v{t0}, v{t0}, v{t1}")
            rest = rest[1:]
    g(f"v_and_b32 v{t0}, {C.tagmask}, v{t0}")
    g(f"v_cmp_ne_u32 vcc, 0, v{t0}")

def poll_tag(g, loads, regs, name, tmp=126, sleep=1):
    lp = g.label("poll"+name); dn = g.label("pdone"+name)
    g("s_mov_b32 s58, 0")
    g(f"{lp}:")
    loads()
    g("s_waitcnt vmcnt(0)")
    tagcheck(g, regs, tmp, tmp+1)
    spin_tail(g, lp, dn, sleep)

def poll_pipe(g, loads, nload, sets, work, name, tmp, gap):
    nreg = loads.nreg
    K = len(sets)
    lp = g.label("pp"+name); dn = g.label("ppd"+name)
    done = [g.label(f"ppk{name}{k}") for k in range(K)]
    g("s_mov_b32 s58, 0")
    for k in range(K):
        loads(sets[k])
        if k < K-1 and gap: g(f"s_sleep {gap}")
    g(f"{lp}:")
    for k in range(K):
        g(f"s_waitcnt vmcnt({nload*(K-1)})")
        tagcheck(g, list(range(sets[k], sets[k]+nreg)), tmp, tmp+1)
        g(f"s_cbranch_vccz {done[k]}")
        loads(sets[k])
    g("s_add_u32 s58, s58, 1")
    g(f"s_cmp_lt_u32 s58, {C.spin_max}")
    g(f"s_cbranch_scc1 {lp}")
    g("s_waitcnt vmcnt(0)")
    for k in range(K):
        g(f"{done[k]}:")
        for r in range(nreg): g(f"v_mov_b32 v{work+r}, v{sets[k]+r}")
        if k < K-1: g(f"s_branch {dn}")
    g(f"{dn}:")

def lds_arrive_wait(g, idx, n):
    lp = g.label("lw")
    g(f"v_mov_b32 v173, {L_CNT + 4*idx}")
    g("v_mov_b32 v174, 1")
    g("s_mov_b64 exec, 1")
    g("ds_add_u32 v173, v174")
    g(f"{lp}:")
    g("ds_read_b32 v174, v173")
    g("s_waitcnt lgkmcnt(0)")
    g("v_readfirstlane_b32 s59, v174")
    g(f"s_cmp_lt_u32 s59, {n}")
    g(f"s_cbranch_scc1 {lp}")
    g("s_mov_b64 exec, -1")

def diag_mfma(g, vAaddr, imm_bp, imm_j, nj, Ws, Ds, vA, masks, lds_base):
    raw = vA
    for j in range(nj):
        for bp in range(2):
            g(f"ds_read_b32 v{raw+2*j+bp}, v{vAaddr} offset:{lds_base + bp*imm_bp + j*imm_j}")
    op = vA + 2*nj
    n = 0
    for j in range(nj):
        for bp in range(2):
            g(f"s_waitcnt lgkmcnt({min(15, 2*nj-1-n)})")
            o = op + 4*(n % 2)
            for q in range(4): g(f"v_and_b32 v{o+q}, v{masks+q}, v{raw+2*j+bp}")
            g("s_nop 1")
            for W, D in zip(Ws, Ds):
                c = "0" if j == 0 else f"v[{D+4*bp}:{D+4*bp+3}]"
                g(f"v_mfma_f32_16x16x32_bf16 v[{D+4*bp}:{D+4*bp+3}], v[{o}:{o+3}], v[{W+4*j}:{W+4*j+3}], {c}")
            n += 1
    g("s_nop 7")

def streaming(g, sfx=''):
    LPT = 16; UB = 4096; NU = 512; NW = 8
    vL16, vTk, vZero, vN, vM, vL = 1, 3, 4, 5, 6, 7
    vAcc = 8; vQ = 16; vS = 20; vU = 36; vK = 48; vV = 112; vKx = 176
    vOffA = 44; vC = 2; vNinf = 240 if C.kx else 176
    vOffB = vNinf + 1
    NSTAT = 3 if C.kx else 2
    g("s_and_b32 s34, s3, 1")
    g("s_lshl_b32 s35, s32, 1")
    g("s_add_u32 s35, s35, s34")
    g("s_lshl_b32 s52, s35, 5")
    g("s_add_u32 s52, s52, s30")
    g("s_lshr_b32 s53, s3, 1")
    g("s_lshl_b32 s54, s33, 1")
    g("s_add_u32 s53, s53, s54")
    g("s_lshl_b32 s54, s52, 21")
    g(f"v_and_b32 v{vC}, 15, v1")
    g(f"v_lshlrev_b32 v{vL16}, 4, v1")
    g("s_lshl_b32 s47, s53, 14")
    def setoff(base, sreg_or_none, add=0, frm=None):
        if frm is None:
            g(f"v_add_u32 v{base}, {sreg_or_none}, v{vL16}")
        else:
            g(f"v_add_u32 v{base}, {add}, v{frm}")
        for k in range(1, 4): g(f"v_add_u32 v{base+k}, {4096*k}, v{base}")
    setoff(vOffA, "s47")
    setoff(vOffB, None, NW*4*UB, vOffA)
    g("s_mov_b32 s43, 0xffff0000")
    g("s_mov_b32 s34, 0x200000\ns_mov_b32 s35, 0x20000\ns_mov_b32 s38, 0x200000\ns_mov_b32 s39, 0x20000")
    g("s_lshl_b32 s55, s52, 8")
    lz = g.label("z")
    g("s_cmp_lg_u32 s3, 0")
    g(f"s_cbranch_scc1 {lz}")
    g(f"v_mov_b32 v36, {L_CNT}")
    for k in range(4): g(f"v_mov_b32 v{48+k}, 0")
    g("ds_write_b128 v36, v[48:51]")
    g("ds_write_b128 v36, v[48:51] offset:16")
    g(f"{lz}:")
    g("s_waitcnt lgkmcnt(0)")
    g("s_add_u32 s32, s6, s54\ns_addc_u32 s33, s7, 0")
    g("s_add_u32 s36, s8, s54\ns_addc_u32 s37, s9, 0")
    g("s_add_u32 s44, s28, s55\ns_addc_u32 s45, s29, 0")
    if WS_TICK: g(f"s_add_u32 s44, s44, {WS_TICK}\ns_addc_u32 s45, s45, 0")
    if not C.early: g("s_barrier")
    def kload(j, base, off): g(f"buffer_load_dwordx4 v[{base+4*j}:{base+4*j+3}], v{off+j//4}, s[32:35], 0 offen offset:{(j%4)*1024} {C.kpol}")
    def vload(j, off): g(f"buffer_load_dwordx4 v[{vV+4*j}:{vV+4*j+3}], v{off+j//4}, s[36:39], 0 offen offset:{(j%4)*1024} {C.vpol}")
    npre = 3*LPT if C.kx else 2*LPT
    for n in range(npre):
        if C.early and n == C.early_n: g("s_barrier")
        if n >= C.win: g(f"s_waitcnt vmcnt({C.win-1})")
        if n < LPT: kload(n, vK, vOffA)
        elif n < 2*LPT: vload(n-LPT, vOffA)
        else: kload(n-2*LPT, vKx, vOffB)
    g.stamp(1)
    g(f"v_mov_b32 v{vZero}, 0\nv_mov_b32 v{vN}, 4\nv_mov_b32 v{vM}, 0xff800000\nv_mov_b32 v{vL}, 0")
    g(f"v_mov_b32 v{vNinf}, 0xff800000")
    for k in range(8): g(f"v_mov_b32 v{vAcc+k}, 0")
    g("s_mov_b32 s48, 0xcccccccc\ns_mov_b32 s49, 0xcccccccc\ns_mov_b32 s50, 0xaaaaaaaa\ns_mov_b32 s51, 0xaaaaaaaa")
    g(f"v_and_b32 v36, 0xf0, v{vL16}")
    g("s_and_b32 s54, s3, 1")
    g("s_lshl_b32 s54, s54, 8")
    g("v_add_u32 v36, s54, v36")
    g("s_mov_b32 s60, 16")
    g("s_mov_b32 s61, 4")
    g("s_barrier")
    g(f"ds_read_b128 v[{vQ}:{vQ+3}], v36 offset:{L_QL}")
    g("s_waitcnt lgkmcnt(0)")
    g.stamp(2)

    def atomic():
        g("s_mov_b64 exec, 1")
        g(f"global_atomic_add v{vTk}, v{vZero}, v{vN}, s[44:45] sc0 sc1")
        g("s_mov_b64 exec, -1")
    def kphase(kreg, wait, refill):
        for j in range(LPT):
            w = wait(j)
            if w is not None: g(f"s_waitcnt vmcnt({w})")
            k = kreg + 4*j
            g(f"v_dot2_f32_bf16 v{vS+j}, v{k}, v{vQ}, 0")
            for t in range(1, 4): g(f"v_dot2_f32_bf16 v{vS+j}, v{k+t}, v{vQ+t}, v{vS+j}")
            if refill is not None: kload(j, kreg, refill)
        if refill is None: g("s_nop 1")
    vP = vS+3
    def softmax(mask):
        for j in range(8):
            g(f"v_add_f32_dpp v{vS+j}, v{vS+j}, v{vS+j} row_ror:8 row_mask:0xf bank_mask:0x3")
            g(f"v_add_f32_dpp v{vS+j}, v{vS+j+8}, v{vS+j+8} row_ror:8 row_mask:0xf bank_mask:0xc")
        for j in range(4):
            g(f"v_add_f32_dpp v{vS+j}, v{vS+j}, v{vS+j} row_half_mirror row_mask:0xf bank_mask:0x5")
            g(f"v_add_f32_dpp v{vS+j}, v{vS+j+4}, v{vS+j+4} row_half_mirror row_mask:0xf bank_mask:0xa")
        u0, w0, u1, w1 = vU, vU+1, vU+2, vU+3
        g(f"v_add_f32_dpp v{u0}, v{vS+0}, v{vS+0} quad_perm:[3,2,1,0] {DPPF}")
        g(f"v_add_f32_dpp v{w0}, v{vS+2}, v{vS+2} quad_perm:[3,2,1,0] {DPPF}")
        g(f"v_add_f32_dpp v{u1}, v{vS+1}, v{vS+1} quad_perm:[3,2,1,0] {DPPF}")
        g(f"v_add_f32_dpp v{w1}, v{vS+3}, v{vS+3} quad_perm:[3,2,1,0] {DPPF}")
        if mask: g(f"v_cmp_gt_u32 vcc, s60, v{vC}")
        g(f"v_cndmask_b32 v{vS+0}, v{u0}, v{w0}, s[48:49]")
        g(f"v_cndmask_b32 v{vS+1}, v{u1}, v{w1}, s[48:49]")
        g("s_nop 1")
        g(f"v_add_f32_dpp v{u0}, v{vS+0}, v{vS+0} quad_perm:[1,0,3,2] {DPPF}")
        g(f"v_add_f32_dpp v{w0}, v{vS+1}, v{vS+1} quad_perm:[1,0,3,2] {DPPF}")
        sc = vS
        g(f"v_cndmask_b32 v{sc}, v{u0}, v{w0}, s[50:51]")
        g(f"v_cvt_pk_bf16_f32 v{sc}, v{sc}, v{sc}")
        g(f"v_and_b32 v{sc}, s43, v{sc}")
        g(f"v_mul_f32 v{sc}, {fx(128**-0.5)}, v{sc}")
        g(f"v_cvt_pk_bf16_f32 v{sc}, v{sc}, v{sc}")
        g(f"v_and_b32 v{sc}, s43, v{sc}")
        if mask: g(f"v_cndmask_b32 v{sc}, v{vNinf}, v{sc}, vcc")
        mx = vS+1; al = vS+2
        g(f"v_max_f32 v{mx}, v{sc}, v{vM}")
        for ctrl in ("row_ror:8", "row_half_mirror", "quad_perm:[3,2,1,0]", "quad_perm:[1,0,3,2]"):
            g("s_nop 1")
            g(f"v_max_f32_dpp v{mx}, v{mx}, v{mx} {ctrl} {DPPF}")
        g(f"v_sub_f32 v{al}, v{vM}, v{mx}")
        g(f"v_sub_f32 v{vP}, v{sc}, v{mx}")
        g(f"v_mul_f32 v{al}, {fx(LOG2E)}, v{al}")
        g(f"v_mul_f32 v{vP}, {fx(LOG2E)}, v{vP}")
        g(f"v_exp_f32 v{al}, v{al}")
        g(f"v_exp_f32 v{vP}, v{vP}")
        g(f"v_mov_b32 v{vM}, v{mx}")
        if C.pvdot:
            g(f"v_cvt_pk_bf16_f32 v{vS+5}, v{vZero}, v{vP}")
            g(f"v_cvt_pk_bf16_f32 v{vS+4}, v{vP}, v{vZero}")
            g(f"v_fma_f32 v{vL}, v{vL}, v{al}, v{vS+5}")
        else:
            g(f"v_fma_f32 v{vL}, v{vL}, v{al}, v{vP}")
        for k in range(8): g(f"v_mul_f32 v{vAcc+k}, v{vAcc+k}, v{al}")
    def vphase(wait, refill):
        for j in range(LPT):
            g(f"s_waitcnt vmcnt({wait})")
            v = vV + 4*j
            if C.pvdot:
                for t in range(4):
                    g(f"v_dot2c_f32_bf16_dpp v{vAcc+2*t}, v{vS+4}, v{v+t} row_newbcast:{j} {DPPF}")
                    g(f"v_dot2c_f32_bf16_dpp v{vAcc+2*t+1}, v{vS+5}, v{v+t} row_newbcast:{j} {DPPF}")
                vload(j, refill)
                continue
            for t in range(4):
                g(f"v_lshlrev_b32 v{vU+2*t}, 16, v{v+t}")
                g(f"v_and_b32 v{vU+2*t+1}, s43, v{v+t}")
            vload(j, refill)
            for k in range(8):
                g(f"v_fmac_f32_dpp v{vAcc+k}, v{vP}, v{vU+k} row_newbcast:{j} {DPPF}")

    if C.kx:
        setoff(vOffA, None, NW*4*UB, vOffB)
        kphase(vK, lambda j: 47, vOffA)
        softmax(False)
        vphase(47, vOffB)
        atomic()
        kphase(vKx, lambda j: 33 if j == 0 else None, None)
        softmax(False)
        vphase(16, vOffA)
        g("s_mov_b32 s62, 16")
        g("s_waitcnt vmcnt(16)")
        g(f"s_branch L_top2{sfx}")
    else:
        g(f"s_lshl_b32 s46, s53, 2")
        g(f"s_add_u32 s46, s46, {NW*4}")
        g("s_mov_b32 s62, 16")
        g(f"s_branch L_entry{sfx}")
    g(f"L_top{sfx}:")
    g(f"s_waitcnt vmcnt({2*LPT})")
    g(f"L_top2{sfx}:")
    g(f"v_readfirstlane_b32 s46, v{vTk}")
    g(f"s_add_u32 s46, s46, {NSTAT*NW*4}")
    g(f"L_entry{sfx}:")
    g("s_mov_b32 s60, s62")
    g("s_add_u32 s47, s46, s61")
    g(f"s_min_u32 s52, s47, {NU}")
    g("s_sub_u32 s62, s52, s46")
    g("s_lshl_b32 s62, s62, 2")
    g("s_lshl_b32 s52, s52, 12")
    g(f"s_cmp_ge_u32 s46, {NU}")
    g("s_cselect_b32 s52, 0, s52")
    g("s_mov_b32 s34, s52")
    g("s_mov_b32 s38, s52")
    g("s_mov_b32 s61, 1")
    g(f"s_cmp_lt_u32 s47, {NU-C.r2}")
    g("s_cselect_b32 s61, 2, s61")
    g(f"s_cmp_lt_u32 s47, {NU-C.r4}")
    g("s_cselect_b32 s61, 4, s61")
    g(f"v_mov_b32 v{vN}, s61")
    atomic()
    g("s_lshl_b32 s47, s46, 12")
    setoff(vOffA, "s47")
    kphase(vK, lambda j: 32, vOffA)
    softmax(True)
    vphase(32, vOffA)
    g(f"s_cmp_lt_u32 s46, {NU}")
    g(f"s_cbranch_scc1 L_top{sfx}")
    g.stamp(3)
    g(f"v_lshlrev_b32 v45, 1, v{vL16}")
    g("s_lshl_b32 s54, s3, 11")
    g("v_add_u32 v45, s54, v45")
    g(f"ds_write_b128 v45, v[{vAcc}:{vAcc+3}] offset:{L_SP}")
    g(f"ds_write_b128 v45, v[{vAcc+4}:{vAcc+7}] offset:{L_SP+16}")
    row_allreduce(g, [vL], "v_add_f32")
    g(f"v_lshrrev_b32 v46, 8, v{vL16}")
    g("v_lshlrev_b32 v46, 3, v46")
    g("s_lshl_b32 s54, s3, 5")
    g("v_add_u32 v46, s54, v46")
    g("s_mov_b32 exec_lo, 0x00010001\ns_mov_b32 exec_hi, 0x00010001")
    g(f"ds_write_b64 v46, v[{vM}:{vM+1}] offset:{L_ST}")
    g("s_mov_b64 exec, -1")
    g("s_waitcnt lgkmcnt(0)")
    g("s_barrier")
    if C.stamps: stamp_store(g, "s3", range(0, 4), only_wave=0)
    g("s_endpgm")
    return vOffB + 4

def aux(g):
    g("s_sub_u32 s34, s3, 4")
    vLane, vC, vG, vHalf = 1, 2, 3, 12
    MK = 104
    g(f"v_and_b32 v{vC}, 15, v{vLane}")
    g(f"v_lshrrev_b32 v{vG}, 4, v{vLane}")
    g(f"v_lshlrev_b32 v11, 4, v{vC}")
    g("s_mul_i32 s52, s34, 1280")
    g("s_mul_i32 s53, s31, 160")
    g("s_add_u32 s53, s53, s52")
    g(f"v_cmp_gt_u32 vcc, 40, v{vLane}")
    g(f"v_lshlrev_b32 v9, 5, v{vLane}")
    g("v_add_u32 v9, s52, v9")
    g(f"v_lshlrev_b32 v15, 2, v{vLane}")
    g("v_add_u32 v15, s53, v15")
    g(f"v_mov_b32 v13, {OOB}")
    g("v_cndmask_b32 v9, v13, v9, vcc")
    g("v_cndmask_b32 v15, v13, v15, vcc")
    g(f"v_lshlrev_b32 v10, 13, v{vG}")
    g("v_add_u32 v10, v10, v11")
    g("s_mul_i32 s35, s31, 80")
    g("s_mul_i32 s52, s34, 20")
    g("s_add_u32 s35, s35, s52")
    g("s_lshl_b32 s52, s35, 13")
    g("s_lshl_b32 s53, s30, 8")
    g("s_add_u32 s52, s52, s53")
    g("s_mov_b32 s42, 5120\ns_mov_b32 s43, 0x20000\ns_mov_b32 s46, 5242880\ns_mov_b32 s47, 0x20000")
    g("s_waitcnt lgkmcnt(0)")
    g("s_mov_b32 s40, s4\ns_mov_b32 s41, s5")
    X = 16
    g(f"buffer_load_dwordx4 v[{X}:{X+3}], v9, s[40:43], 0 offen")
    g(f"buffer_load_dwordx4 v[{X+4}:{X+7}], v9, s[40:43], 0 offen offset:16")
    g(f"buffer_load_dword v{X+8}, v15, s[40:43], 0 offen")
    g("s_mov_b32 s44, s10\ns_mov_b32 s45, s11")
    WQ = 36; W1 = 56; B1R = 76
    for j in range(5):
        g(f"buffer_load_dwordx4 v[{WQ+4*j}:{WQ+4*j+3}], v10, s[44:47], s52 offen nt")
        if j < 4: g("s_add_u32 s52, s52, 32768")
    g(f"s_load_dword s96, s[28:29], {WS_EPOCH}")
    srd(g, 36, 28, WS_SIZE)
    g("s_lshl_b32 s54, s32, 6")
    g("s_add_u32 s54, s54, s30")
    g("s_lshl_b32 s54, s54, 8")
    if WS_TICK: g(f"s_add_u32 s54, s54, {WS_TICK}")
    g("s_cmp_lg_u32 s33, 0")
    g(f"s_cselect_b32 s54, {OOB}, s54")
    g("s_cmp_lg_u32 s34, 2")
    g(f"s_cselect_b32 s54, {OOB}, s54")
    g(f"v_lshlrev_b32 v171, 13, v{vLane}")
    g(f"v_cmp_gt_u32 vcc, 2, v{vLane}")
    g(f"v_mov_b32 v172, {OOB}")
    g("v_add_u32 v171, s54, v171")
    g("v_cndmask_b32 v171, v172, v171, vcc")
    g("v_mov_b32 v172, 0")
    g("buffer_store_dword v172, v171, s[36:39], 0 offen sc1")
    NCLR = 1
    g("s_barrier")
    g(f"v_lshlrev_b32 v8, 4, v{vLane}")
    g(f"s_mov_b32 s95, {C.tagmask}")
    g("s_mov_b32 s97, 255\ns_mov_b32 s98, 255\ns_mov_b32 s99, 0\ns_mov_b32 s62, 255")
    g("s_sub_u32 s52, s31, 1")
    g("s_cmp_lt_u32 s31, 3\ns_cselect_b32 s97, s31, s97")
    g("s_cmp_eq_u32 s31, 4\ns_cselect_b32 s97, s52, s97")
    g("s_cmp_eq_u32 s31, 5\ns_cselect_b32 s97, s52, s97")
    g("s_mul_i32 s52, s30, 3")
    g("s_cmp_eq_u32 s31, 3\ns_cselect_b32 s98, 0, s98\ns_cselect_b32 s99, 2, s99\ns_cselect_b32 s62, s52, s62")
    g("s_add_u32 s52, s52, 1")
    g("s_cmp_eq_u32 s31, 6\ns_cselect_b32 s98, 2, s98\ns_cselect_b32 s99, 2, s99\ns_cselect_b32 s62, s52, s62")
    g("s_add_u32 s52, s52, 1")
    g("s_cmp_eq_u32 s31, 7\ns_cselect_b32 s98, 4, s98\ns_cselect_b32 s99, 1, s99\ns_cselect_b32 s62, s52, s62")
    g("s_lshl_b32 s52, s30, 2")
    g("s_lshl_b32 s53, s32, 1")
    g("s_add_u32 s52, s52, s53")
    g("s_lshl_b32 s52, s52, 2")
    g("s_add_u32 s52, s52, s33")
    g("s_lshl_b32 s52, s52, 10")
    g(f"s_add_u32 s57, s52, {WS_P1}")
    g("s_mul_i32 s56, s30, 5")
    g(f"v_and_b32 v100, 7, v{vLane}")
    g("v_lshrrev_b32 v101, 1, v100")
    g("v_and_b32 v100, 1, v100")
    g("v_lshlrev_b32 v100, 4, v100")
    g("v_mov_b32 v102, 0xffff")
    g("v_lshlrev_b32 v102, v100, v102")
    for q in range(4):
        g(f"v_cmp_eq_u32 vcc, {q}, v101")
        g("s_nop 1")
        g(f"v_cndmask_b32 v{MK+q}, 0, v102, vcc")
    g(f"v_lshrrev_b32 v{vHalf}, 3, v{vLane}")
    g(f"v_and_b32 v{vHalf}, 1, v{vHalf}")
    g(f"v_mul_u32_u24 v102, 320, v{vHalf}")
    g("s_mul_i32 s52, s34, 20")
    g(f"v_add_u32 v79, s52, v{vG}")
    g("v_lshlrev_b32 v79, 2, v79")
    g("v_add_u32 v102, v102, v79")
    g("s_mul_i32 s52, s34, 320")
    g(f"v_lshlrev_b32 v79, 3, v{vLane}")
    g("v_add_u32 v79, s52, v79")
    g("v_mov_b32 v90, 0x3f803f80")
    g("v_mov_b32 v91, 0\nv_mov_b32 v92, 0\nv_mov_b32 v93, 0\nv_mov_b32 v94, 0")
    g(f"v_lshrrev_b32 v100, 1, v{vG}")
    g("v_lshlrev_b32 v100, 9, v100")
    g(f"v_lshlrev_b32 v101, 5, v{vC}")
    g("v_add_u32 v100, v100, v101")
    g(f"v_and_b32 v101, 1, v{vG}")
    g("v_lshlrev_b32 v101, 4, v101")
    g("v_add_u32 v103, v100, v101")
    g(f"v_mul_u32_u24 v14, 1280, v{vG}")
    g("v_add_u32 v14, v14, v11")
    g(f"v_and_b32 v109, 31, v{vLane}")
    g("v_lshlrev_b32 v13, 4, v109")
    g(f"s_waitcnt vmcnt({5+NCLR})")
    g.stamp(4)
    for t in range(0, 8, 2):
        g(f"v_dot2c_f32_bf16 v91, v{X+t}, v90")
        g(f"v_dot2c_f32_bf16 v92, v{X+t}, v{X+t}")
        g(f"v_dot2c_f32_bf16 v93, v{X+t+1}, v90")
        g(f"v_dot2c_f32_bf16 v94, v{X+t+1}, v{X+t+1}")
    g(f"v_lshlrev_b32 v95, 16, v{X+8}")
    g(f"v_and_b32 v96, 0xffff0000, v{X+8}")
    g("s_nop 0")
    g("v_add_f32 v91, v91, v93")
    g("v_add_f32 v92, v92, v94")
    row_allreduce(g, [91, 92], "v_add_f32")
    multi_xswap(g, [91, 92], [93, 94], 16)
    multi_xswap(g, [91, 92], [93, 94], 32)
    g(f"v_mul_f32 v91, {fx(1/640)}, v91")
    g(f"v_mul_f32 v92, {fx(1/640)}, v92")
    g("v_fma_f32 v92, -v91, v91, v92")
    g("v_max_f32 v92, 0, v92")
    g("v_cvt_pk_bf16_f32 v91, v91, v92")
    g("v_and_b32 v92, 0xffff0000, v91")
    g("v_lshlrev_b32 v91, 16, v91")
    g(f"v_add_f32 v92, {fx(1e-5)}, v92")
    g("v_sub_f32 v95, v95, v91")
    g("v_sub_f32 v96, v96, v91")
    bf16r(g, 92, 92)
    g("v_cvt_pk_bf16_f32 v95, v95, v96")
    g("v_sqrt_f32 v92, v92")
    g("v_and_b32 v96, 0xffff0000, v95")
    g("v_lshlrev_b32 v95, 16, v95")
    bf16r(g, 92, 92)
    g("v_rcp_f32 v93, v92")
    g("s_nop 0")
    g("v_mul_f32 v97, v95, v93")
    g("v_mul_f32 v98, v96, v93")
    g("v_fma_f32 v99, -v97, v92, v95")
    g("v_fma_f32 v100, -v98, v92, v96")
    g("v_fma_f32 v97, v99, v93, v97")
    g("v_fma_f32 v98, v100, v93, v98")
    g("v_cvt_pk_bf16_f32 v99, v98, v98")
    g("v_cvt_pk_bf16_f32 v98, v97, v97")
    g("s_mov_b32 exec_hi, 0xff")
    g(f"ds_write_b64 v79, v[98:99] offset:{L_XN}")
    g("s_mov_b64 exec, -1")
    g("s_waitcnt lgkmcnt(0)")
    lds_arrive_wait(g, 0, 4)
    g(f"s_waitcnt vmcnt({NCLR})")
    g.stamp(14)
    DQ = 148; DH = 156
    diag_mfma(g, 102, 640, 16, 5, [WQ], [DQ], 108, MK, L_XN)
    g("s_lshl_b32 s52, s34, 11")
    g("v_add_u32 v100, s52, v103")
    g(f"ds_write_b128 v100, v[{DQ}:{DQ+3}] offset:{L_QPL}")
    g(f"ds_write_b128 v100, v[{DQ+4}:{DQ+7}] offset:{L_QPL+1024}")
    g("s_waitcnt vmcnt(0) lgkmcnt(0)")
    g("s_add_u32 s96, s96, 1")
    g(f"v_mov_b32 v{TAG}, s96")
    lds_arrive_wait(g, 1, 4)
    g.stamp(5)
    def sum4_lds(vaddr, R, base, stride=2048):
        for a2 in range(4):
            g(f"ds_read_b128 v[{R+4*a2}:{R+4*a2+3}], v{vaddr} offset:{base + a2*stride}")
        g("s_waitcnt lgkmcnt(0)")
        for k in range(4): g(f"v_add_f32 v{R+k}, v{R+k}, v{R+4+k}")
        for k in range(4): g(f"v_add_f32 v{R+8+k}, v{R+8+k}, v{R+12+k}")
        for k in range(4): g(f"v_add_f32 v{R+k}, v{R+k}, v{R+8+k}")
    g("s_lshl_b32 s52, s34, 9")
    g("v_add_u32 v15, s52, v13")
    g("s_lshl_b32 s100, s2, 12")
    g(f"s_add_u32 s100, s100, {WS_QP}")
    sum4_lds(15, 16, L_QPL)
    tagw(g, range(16, 20))
    g("s_mov_b32 exec_hi, 0")
    g("buffer_store_dwordx4 v[16:19], v15, s[36:39], s100 offen sc1")
    g("s_mov_b64 exec, -1")
    g.stamp(6)
    GQ = 112
    l_noq = g.label("noq")
    g("s_cmp_ge_u32 s34, 2")
    g(f"s_cbranch_scc1 {l_noq}")
    g("s_lshl_b32 s52, s30, 15")
    g("s_lshl_b32 s53, s32, 1")
    g("s_add_u32 s53, s53, s34")
    g("s_lshl_b32 s53, s53, 9")
    g("s_add_u32 s52, s52, s53")
    g(f"s_add_u32 s52, s52, {WS_QP}")
    g(f"s_sleep {C.sleepg}")
    g(f"v_lshlrev_b32 v{GQ+16}, 12, v{vLane}")
    g(f"v_add_u32 v{GQ+16}, 508, v{GQ+16}")
    g("s_mov_b64 exec, 0xff")
    def lightload(): g(f"buffer_load_dword v{GQ}, v{GQ+16}, s[36:39], s52 offen sc1")
    poll_tag(g, lightload, [GQ], "ql")
    g("s_mov_b64 exec, -1")
    g(f"v_lshrrev_b32 v{GQ+16}, 5, v{vLane}")
    g(f"v_lshlrev_b32 v{GQ+16}, 12, v{GQ+16}")
    g(f"v_add_u32 v{GQ+16}, v{GQ+16}, v13")
    def qloads():
        g("s_mov_b32 s53, s52")
        for t in range(4):
            g(f"buffer_load_dwordx4 v[{GQ+4*t}:{GQ+4*t+3}], v{GQ+16}, s[36:39], s53 offen sc1")
            if t < 3: g("s_add_u32 s53, s53, 8192")
    poll_tag(g, qloads, list(range(GQ, GQ+16)), "q", tmp=GQ+18)
    for k in range(4): g(f"v_add_f32 v{GQ+k}, v{GQ+k}, v{GQ+4+k}")
    for k in range(4): g(f"v_add_f32 v{GQ+8+k}, v{GQ+8+k}, v{GQ+12+k}")
    for k in range(4): g(f"v_add_f32 v{GQ+k}, v{GQ+k}, v{GQ+8+k}")
    multi_xswap(g, [GQ+k for k in range(4)], [GQ+4+k for k in range(4)], 32)
    g(f"v_cvt_pk_bf16_f32 v{GQ}, v{GQ}, v{GQ+1}")
    g(f"v_cvt_pk_bf16_f32 v{GQ+1}, v{GQ+2}, v{GQ+3}")
    g("v_lshrrev_b32 v17, 1, v13")
    g("s_lshl_b32 s52, s34, 8")
    g("v_add_u32 v17, s52, v17")
    g(f"ds_write_b64 v17, v[{GQ}:{GQ+1}] offset:{L_QL}")
    g("s_waitcnt lgkmcnt(0)")
    g(f"{l_noq}:")
    g.stamp(7)
    g("s_barrier")
    g.stamp(8)
    srd(g, 48, 16, 2211840)
    g(f"v_cmp_gt_u32 vcc, 7, v{vC}")
    g(f"v_mul_u32_u24 v78, 3456, v{vG}")
    g("v_add_u32 v78, v78, v11")
    g(f"v_mov_b32 v79, {OOB}")
    g("v_cndmask_b32 v78, v79, v78, vcc")
    g("s_mul_i32 s54, s35, 3456")
    g("s_mul_i32 s55, s30, 108")
    g("s_add_u32 s54, s54, s55")
    for j in range(5):
        g(f"buffer_load_dwordx4 v[{W1+4*j}:{W1+4*j+3}], v78, s[48:51], s54 offen nt")
        if j < 4: g("s_add_u32 s54, s54, 13824")
    g("s_waitcnt vmcnt(0)")
    diag_mfma(g, 102, 640, 16, 5, [W1], [DH], 108, MK, L_XN)
    g("s_lshl_b32 s52, s34, 11")
    g("v_add_u32 v100, s52, v103")
    g(f"ds_write_b128 v100, v[{DH}:{DH+3}] offset:{L_HPL}")
    g(f"ds_write_b128 v100, v[{DH+4}:{DH+7}] offset:{L_HPL+1024}")
    g("s_waitcnt lgkmcnt(0)")
    lds_arrive_wait(g, 4, 4)
    sum4_lds(15, 28, L_HPL)
    tagw(g, range(28, 32))
    g("s_lshl_b32 s52, s34, 8")
    g("v_add_u32 v100, s52, v13")
    g("s_add_u32 s52, s100, 2048")
    g("s_mov_b64 exec, 0xffff")
    g("buffer_store_dwordx4 v[28:31], v100, s[36:39], s52 offen sc1")
    g("s_mov_b64 exec, -1")
    WB = 16; SC = 48; DD = 80
    l_wo = g.label("wo"); l_b3 = g.label("b3")
    g("s_cmp_eq_u32 s99, 0")
    g(f"s_cbranch_scc1 {l_wo}")
    srd(g, 48, 18, 3456)
    g("s_mul_i32 s52, s30, 108")
    g(f"v_lshlrev_b32 v15, 3, v{vC}")
    g("v_add_u32 v15, s52, v15")
    g(f"buffer_load_dwordx2 v[{B1R}:{B1R+1}], v15, s[48:51], 0 offen")
    srd(g, 48, 20, 2211840)
    g("s_mul_i32 s52, s30, 54")
    g("s_lshl_b32 s53, s34, 4")
    g("s_add_u32 s52, s52, s53")
    g("s_mul_i32 s52, s52, 1280")
    g("s_lshl_b32 s54, s98, 8")
    g("s_add_u32 s52, s52, s54")
    g(f"v_add_u32 v78, s53, v{vG}")
    for jj in range(4):
        g(f"v_add_u32 v{88+jj}, s52, v14")
        g(f"v_cmp_gt_u32 vcc, {54-4*jj}, v78")
        g(f"v_mov_b32 v92, {OOB}")
        g("s_add_u32 s52, s52, 5120")
        g(f"v_cndmask_b32 v{88+jj}, v92, v{88+jj}, vcc")
    for jj in range(4):
        g(f"buffer_load_dwordx4 v[{WB+4*jj}:{WB+4*jj+3}], v{88+jj}, s[48:51], 0 offen nt")
    l_u1 = g.label("u1")
    g("s_cmp_lt_u32 s99, 2")
    g(f"s_cbranch_scc1 {l_u1}")
    for jj in range(4):
        g(f"buffer_load_dwordx4 v[{WB+16+4*jj}:{WB+16+4*jj+3}], v{88+jj}, s[48:51], 0 offen offset:256 nt")
    g(f"{l_u1}:")
    g("s_lshl_b32 s52, s30, 15")
    g("s_lshl_b32 s53, s34, 8")
    g("s_add_u32 s52, s52, s53")
    g(f"s_add_u32 s52, s52, {WS_QP+2048}")
    g(f"v_lshlrev_b32 v{GQ+16}, 12, v{vG}")
    g(f"v_add_u32 v{GQ+16}, v{GQ+16}, v11")
    def hloads():
        g(f"buffer_load_dwordx4 v[{GQ}:{GQ+3}], v{GQ+16}, s[36:39], s52 offen sc1")
        g("s_add_u32 s53, s52, 16384")
        g(f"buffer_load_dwordx4 v[{GQ+4}:{GQ+7}], v{GQ+16}, s[36:39], s53 offen sc1")
    poll_tag(g, hloads, list(range(GQ, GQ+8)), "h", tmp=GQ+18, sleep=4)
    for k in range(4): g(f"v_add_f32 v{GQ+k}, v{GQ+k}, v{GQ+4+k}")
    multi_xswap(g, [GQ+k for k in range(4)], [GQ+4+k for k in range(4)], 16)
    multi_xswap(g, [GQ+k for k in range(4)], [GQ+4+k for k in range(4)], 32)
    g(f"v_lshlrev_b32 v52, 16, v{B1R}\nv_and_b32 v53, 0xffff0000, v{B1R}\nv_lshlrev_b32 v54, 16, v{B1R+1}\nv_and_b32 v55, 0xffff0000, v{B1R+1}")
    for k in range(4): bf16r(g, GQ+k, GQ+k)
    for k in range(4): g(f"v_add_f32 v{GQ+k}, v{GQ+k}, v{52+k}")
    for k in range(4): bf16r(g, GQ+k, GQ+k)
    for k in range(4): g(f"v_max_f32 v{GQ+k}, 0, v{GQ+k}")
    for k in range(4): g(f"v_mul_f32 v{GQ+k}, v{GQ+k}, v{GQ+k}")
    for k in range(4): g(f"v_cvt_pk_bf16_f32 v{GQ+k}, v{GQ+k}, v{GQ+k}")
    g(f"v_lshlrev_b32 v52, 2, v{vC}")
    for k in range(4):
        g(f"v_cmp_gt_u32 vcc, {54-k}, v52")
        g("s_nop 1")
        g(f"v_cndmask_b32 v{GQ+k}, 0, v{GQ+k}, vcc")
    g("s_lshl_b32 s52, s34, 8")
    g("v_add_u32 v101, s52, v11")
    g("s_mov_b64 exec, 0xffff")
    g(f"ds_write_b128 v101, v[{GQ}:{GQ+3}] offset:{L_HL}")
    g("s_mov_b64 exec, -1")
    g("s_waitcnt lgkmcnt(0)")
    lds_arrive_wait(g, 2, 4)
    g(f"v_lshlrev_b32 v79, 8, v{vHalf}")
    g("v_lshlrev_b32 v78, 2, v78")
    g("v_add_u32 v78, v78, v79")
    g("s_waitcnt vmcnt(0)")
    DD2 = 92
    diag_mfma(g, 78, 512, 16, 4, [WB, WB+16], [DD, DD2], SC, MK, L_HL)
    g("s_lshl_b32 s52, s34, 11")
    g("v_add_u32 v100, s52, v103")
    g(f"ds_write_b128 v100, v[{DD}:{DD+3}] offset:{L_QPL}")
    g(f"ds_write_b128 v100, v[{DD+4}:{DD+7}] offset:{L_QPL+1024}")
    g(f"ds_write_b128 v100, v[{DD2}:{DD2+3}] offset:{L_HPL}")
    g(f"ds_write_b128 v100, v[{DD2+4}:{DD2+7}] offset:{L_HPL+1024}")
    g("s_waitcnt lgkmcnt(0)")
    lds_arrive_wait(g, 3, 4)
    g(f"v_lshrrev_b32 v108, 5, v{vLane}")
    g(f"v_mul_u32_u24 v110, {L_HPL-L_QPL}, v108")
    g(f"v_and_b32 v109, 31, v{vLane}")
    g("s_lshl_b32 s52, s34, 5")
    g("v_add_u32 v109, s52, v109")
    g("v_lshlrev_b32 v111, 2, v109")
    g("v_add_u32 v110, v110, v111")
    for a2 in range(4):
        for bb in range(4):
            g(f"ds_read_b32 v{112+4*a2+bb}, v110 offset:{L_QPL + a2*2048 + bb*512}")
    g("s_waitcnt lgkmcnt(0)")
    for k in range(4): g(f"v_add_f32 v{112+k}, v{112+k}, v{116+k}")
    for k in range(4): g(f"v_add_f32 v{120+k}, v{120+k}, v{124+k}")
    for k in range(4): g(f"v_add_f32 v{112+k}, v{112+k}, v{120+k}")
    tagw(g, range(112, 116))
    g("s_add_u32 s52, s56, s98")
    g("s_lshl_b32 s52, s52, 11")
    g(f"s_add_u32 s52, s52, {WS_YM}")
    g("v_lshlrev_b32 v110, 11, v108")
    g("v_lshlrev_b32 v111, 4, v109")
    g("v_add_u32 v110, v110, v111")
    g("s_cmp_lt_u32 s99, 2")
    g("s_cselect_b32 exec_hi, 0, -1")
    g("buffer_store_dwordx4 v[112:115], v110, s[36:39], s52 offen sc1")
    g("s_mov_b64 exec, -1")
    g("s_cmp_ge_u32 s62, 80")
    g(f"s_cbranch_scc1 {l_b3}")
    g("s_cmp_lg_u32 s34, 0")
    g(f"s_cbranch_scc1 {l_b3}")
    g("s_lshr_b32 s54, s62, 4")
    g("s_and_b32 s53, s62, 15")
    g("s_lshl_b32 s55, s54, 11")
    g("s_lshl_b32 s63, s53, 7")
    g("s_add_u32 s55, s55, s63")
    g("s_lshl_b32 s63, s62, 4")
    g(f"v_lshrrev_b32 v88, 3, v{vLane}")
    g(f"v_and_b32 v89, 7, v{vLane}")
    g("v_lshlrev_b32 v90, 4, v89")
    g("v_lshlrev_b32 v91, 1, v89")
    g("v_add_u32 v91, s63, v91")
    srd(g, 48, 22, 1280)
    g("buffer_load_ushort v94, v91, s[48:51], 0 offen")
    for k in range(4):
        g(f"buffer_load_ushort v{80+k}, v91, s[40:43], 0 offen offset:{1280*k}")
    g("v_mul_u32_u24 v93, 10240, v88")
    g("v_add_u32 v93, v93, v90")
    YR = 16
    def recloads(base):
        def f():
            g(f"s_add_u32 s52, s55, {base}")
            for t in range(4):
                g(f"buffer_load_dwordx4 v[{YR+4*t}:{YR+4*t+3}], v93, s[36:39], s52 offen sc1")
                if t < 3: g("s_add_u32 s52, s52, 81920")
        return f
    def red8(R, T):
        for t in range(1, 4):
            for k in range(4): g(f"v_add_f32 v{R+k}, v{R+k}, v{R+4*t+k}")
        g("s_nop 1")
        for k in range(4): g(f"v_add_f32_dpp v{R+k}, v{R+k}, v{R+k} row_ror:8 {DPPF}")
        multi_xswap(g, [R+k for k in range(4)], [T+k for k in range(4)], 16)
        multi_xswap(g, [R+k for k in range(4)], [T+k for k in range(4)], 32)
    poll_tag(g, recloads(WS_YM), list(range(YR, YR+16)), "ym", sleep=8)
    red8(YR, YR+4)
    for k in range(4): g(f"v_lshlrev_b32 v{80+k}, 16, v{80+k}")
    g("v_lshlrev_b32 v94, 16, v94")
    for k in range(4): bf16r(g, YR+k, YR+k)
    for k in range(4): g(f"v_add_f32 v{84+k}, v{YR+k}, v94")
    for k in range(4): bf16r(g, 84+k, 84+k)
    g(f"s_branch {l_b3}")
    g(f"{l_wo}:")
    srd(g, 48, 12, 5242880)
    g("s_lshl_b32 s52, s30, 7")
    g("s_mul_i32 s52, s52, 1280")
    g("s_lshl_b32 s53, s97, 8")
    g("s_add_u32 s52, s52, s53")
    g("s_lshl_b32 s53, s34, 6")
    g("s_add_u32 s52, s52, s53")
    g(f"v_lshrrev_b32 v78, 2, v{vLane}")
    g("v_mul_u32_u24 v78, 1280, v78")
    g(f"v_and_b32 v79, 3, v{vLane}")
    g("v_lshlrev_b32 v79, 4, v79")
    g("v_add_u32 v78, v78, v79")
    for r in range(8):
        g(f"buffer_load_dwordx4 v[{WB+4*r}:{WB+4*r+3}], v78, s[48:51], s52 offen nt")
        if r < 7: g(f"s_add_u32 s52, s52, {16*1280}")
    g("s_lshl_b32 s52, s34, 13")
    g("v_add_u32 v79, s52, v8")
    g("v_mov_b32 v88, 0\nv_mov_b32 v89, 0\nv_mov_b32 v90, 0\nv_mov_b32 v91, 0")
    g("s_mov_b64 exec, 0xffff")
    g(f"ds_write_b128 v8, v[88:91] offset:{L_OL+1024}")
    g("s_mov_b64 exec, -1")
    for r in range(8):
        g(f"s_waitcnt vmcnt({7-r})")
        g(f"ds_write_b128 v79, v[{WB+4*r}:{WB+4*r+3}] offset:{L_WT + r*1024}")
    g(f"v_lshlrev_b32 v78, 9, v{vG}")
    g(f"v_lshlrev_b32 v79, 1, v{vC}")
    g("v_add_u32 v78, v78, v79")
    g("v_add_u32 v78, s52, v78")
    g("s_waitcnt lgkmcnt(0)")
    for s_ in range(4):
        for t in range(2):
            for q in range(4):
                r = WB + (s_*2+t)*4 + q
                off = L_WT + s_*2048 + q*128 + t*32
                g(f"ds_read_u16 v{r}, v78 offset:{off}")
                g(f"ds_read_u16 v{112+t*4+q}, v78 offset:{off+64}")
        g("s_waitcnt lgkmcnt(0)")
        for t in range(2):
            for q in range(4):
                r = WB + (s_*2+t)*4 + q
                g(f"v_lshl_or_b32 v{r}, v{112+t*4+q}, 16, v{r}")
    g(f"v_lshlrev_b32 v78, 8, v{vC}")
    g(f"v_lshlrev_b32 v79, 4, v{vG}")
    g("v_add_u32 v78, v78, v79")
    g(f"v_cmp_gt_u32 vcc, 4, v{vC}")
    g("v_mov_b32 v79, 1024")
    g("s_nop 0")
    g("v_cndmask_b32 v78, v79, v78, vcc")
    g(f"{l_b3}:")
    g.stamp(9)
    g("s_barrier")
    g.stamp(10)
    l_t1 = g.label("t1")
    g("s_cmp_lg_u32 s34, 0")
    g(f"s_cbranch_scc1 {l_t1}")
    g(f"v_lshrrev_b32 v108, 5, v{vLane}")
    g("v_lshlrev_b32 v110, 11, v108")
    g("v_add_u32 v110, v110, v13")
    AC = 112; STt = 144
    g("v_lshlrev_b32 v160, 5, v108")
    for s_ in range(2):
        for r in range(0, 4, 2):
            p = s_*4+r
            g(f"ds_read_b128 v[{STt+2*p}:{STt+2*p+3}], v160 offset:{L_ST + s_*64 + r*8}")
    for s_ in range(2):
        for r in range(4):
            p = s_*4+r
            g(f"ds_read_b128 v[{AC+4*p}:{AC+4*p+3}], v110 offset:{L_SP + s_*4096 + r*512}")
    g("s_waitcnt lgkmcnt(8)")
    g(f"v_max3_f32 v161, v{STt}, v{STt+2}, v{STt+4}")
    g(f"v_max3_f32 v161, v161, v{STt+6}, v{STt+8}")
    g(f"v_max3_f32 v161, v161, v{STt+10}, v{STt+12}")
    g(f"v_max_f32 v161, v161, v{STt+14}")
    for p in range(8): g(f"v_sub_f32 v{STt+2*p}, v{STt+2*p}, v161")
    for p in range(8): g(f"v_mul_f32 v{STt+2*p}, {fx(LOG2E)}, v{STt+2*p}")
    for p in range(8): g(f"v_exp_f32 v{STt+2*p}, v{STt+2*p}")
    g("s_nop 0")
    g(f"v_mul_f32 v162, v{STt}, v{STt+1}")
    for p in range(1, 8): g(f"v_fmac_f32 v162, v{STt+2*p}, v{STt+2*p+1}")
    g("s_waitcnt lgkmcnt(0)")
    for k in range(4): g(f"v_mul_f32 v{164+k}, v{AC+k}, v{STt}")
    for p in range(1, 8):
        for k in range(4): g(f"v_fmac_f32 v{164+k}, v{AC+4*p+k}, v{STt+2*p}")
    tagw(g, range(164, 168))
    g("v_lshlrev_b32 v163, 12, v108")
    g("v_add_u32 v163, v163, v13")
    g("buffer_store_dwordx4 v[164:167], v163, s[36:39], s57 offen sc1")
    g("v_mov_b32 v168, v161\nv_mov_b32 v169, v162")
    tagw(g, [168, 169])
    g("s_mov_b32 exec_lo, 1\ns_mov_b32 exec_hi, 1")
    g("buffer_store_dwordx2 v[168:169], v163, s[36:39], s57 offen offset:512 sc1")
    g("s_mov_b64 exec, -1")
    g.stamp(11)
    g(f"{l_t1}:")
    l_notunit = g.label("notunit")
    g("s_cmp_ge_u32 s97, 5")
    g(f"s_cbranch_scc1 {l_notunit}")
    g(f"v_lshrrev_b32 v108, 5, v{vLane}")
    g("v_lshlrev_b32 v110, 10, v108")
    g("v_add_u32 v111, v110, v13")
    g("s_lshl_b32 s52, s30, 2")
    g("s_add_u32 s52, s52, s34")
    g("s_lshl_b32 s52, s52, 12")
    g(f"s_add_u32 s59, s52, {WS_P1}")
    O0, O1, S0, S1 = 112, 116, 120, 122
    def h1loads(B):
        g(f"buffer_load_dwordx4 v[{B}:{B+3}], v111, s[36:39], s59 offen sc1")
        g(f"buffer_load_dwordx4 v[{B+4}:{B+7}], v111, s[36:39], s59 offen offset:2048 sc1")
        g(f"buffer_load_dwordx2 v[{B+8}:{B+9}], v110, s[36:39], s59 offen offset:512 sc1")
        g(f"buffer_load_dwordx2 v[{B+10}:{B+11}], v110, s[36:39], s59 offen offset:2560 sc1")
    h1loads.nreg = 12
    if C.pipe:
        poll_pipe(g, h1loads, 4, [176, 188, 200], O0, "h1", 126, C.gap)
    else:
        poll_tag(g, lambda: h1loads(O0), list(range(O0, O0+12)), "h1", sleep=0)
    g.stamp(12)
    g(f"v_and_b32 v{S0}, 0xffffff00, v{S0}")
    g(f"v_and_b32 v{S1}, 0xffffff00, v{S1}")
    g(f"v_max_f32 v124, v{S0}, v{S1}")
    multi_xswap(g, [124], [125], 32, "v_max_f32")
    g(f"v_sub_f32 v{S0}, v{S0}, v124")
    g(f"v_sub_f32 v{S1}, v{S1}, v124")
    g(f"v_mul_f32 v{S0}, {fx(LOG2E)}, v{S0}")
    g(f"v_mul_f32 v{S1}, {fx(LOG2E)}, v{S1}")
    g(f"v_exp_f32 v{S0}, v{S0}")
    g(f"v_exp_f32 v{S1}, v{S1}")
    g("s_nop 0")
    g(f"v_mul_f32 v128, v{S0}, v{S0+1}")
    g(f"v_fmac_f32 v128, v{S1}, v{S1+1}")
    for k in range(4): g(f"v_mul_f32 v{129+k}, v{O0+k}, v{S0}")
    for k in range(4): g(f"v_fmac_f32 v{129+k}, v{O1+k}, v{S1}")
    multi_xswap(g, [128+k for k in range(5)], [134+k for k in range(5)], 32)
    g("v_rcp_f32 v133, v128")
    g("s_nop 0")
    for k in range(4): g(f"v_mul_f32 v{134+k}, v{129+k}, v133")
    for k in range(4): g(f"v_fma_f32 v{138+k}, -v{134+k}, v128, v{129+k}")
    for k in range(4): g(f"v_fma_f32 v{134+k}, v{138+k}, v133, v{134+k}")
    g("v_cvt_pk_bf16_f32 v140, v134, v135")
    g("v_cvt_pk_bf16_f32 v141, v136, v137")
    g("v_lshrrev_b32 v134, 1, v13")
    g("s_lshl_b32 s52, s34, 8")
    g("v_add_u32 v134, s52, v134")
    g(f"ds_write_b64 v134, v[140:141] offset:{L_OL}")
    g("s_add_u32 s52, s56, s97")
    g("s_lshl_b32 s52, s52, 11")
    g("s_lshl_b32 s53, s34, 9")
    g("s_add_u32 s52, s52, s53")
    g(f"s_add_u32 s52, s52, {WS_Y}")
    g("s_waitcnt lgkmcnt(0)")
    g("s_barrier")
    for s_ in range(4):
        g(f"ds_read_b128 v[{112+4*s_}:{112+4*s_+3}], v78 offset:{L_OL + s_*64}")
    for s_ in range(4):
        g(f"s_waitcnt lgkmcnt({3-s_})")
        for t in range(2):
            c = "0" if s_ == 0 else f"v[{DD+4*t}:{DD+4*t+3}]"
            B = WB + (s_*2+t)*4
            g(f"v_mfma_f32_16x16x32_bf16 v[{DD+4*t}:{DD+4*t+3}], v[{112+4*s_}:{112+4*s_+3}], v[{B}:{B+3}], {c}")
    g("s_nop 7")
    tagw(g, range(DD, DD+8))
    g("s_mov_b64 exec, 0xffff")
    g(f"buffer_store_dwordx4 v[{DD}:{DD+3}], v11, s[36:39], s52 offen sc1")
    g(f"buffer_store_dwordx4 v[{DD+4}:{DD+7}], v11, s[36:39], s52 offen offset:256 sc1")
    g("s_mov_b64 exec, -1")
    g.stamp(13)
    if C.stamps: stamp_store(g, "s3", range(4, 15), only_wave=4)
    g("s_endpgm")
    g(f"{l_notunit}:")
    g("s_cmp_lg_u32 s34, 0")
    g("s_cbranch_scc1 L_end")
    l_st = g.label("stonly")
    g("s_cmp_ge_u32 s62, 80")
    g(f"s_cbranch_scc1 {l_st}")
    def yloads(B):
        g(f"s_add_u32 s52, s55, {WS_Y}")
        for t in range(4):
            g(f"buffer_load_dwordx4 v[{B+4*t}:{B+4*t+3}], v93, s[36:39], s52 offen sc1")
            if t < 3: g("s_add_u32 s52, s52, 81920")
    yloads.nreg = 16
    if C.pipe:
        poll_pipe(g, yloads, 4, [176, 192, 208], YR, "y", 126, C.gap)
    else:
        poll_tag(g, recloads(WS_Y), list(range(YR, YR+16)), "y", sleep=0)
    g.stamp(12)
    red8(YR, YR+4)
    for k in range(4): bf16r(g, YR+k, YR+k)
    for k in range(4): g(f"v_add_f32 v{YR+k}, v{YR+k}, v{80+k}")
    for k in range(4): bf16r(g, YR+k, YR+k)
    for k in range(4): g(f"v_add_f32 v{YR+k}, v{YR+k}, v{84+k}")
    for k in range(4): g(f"v_cvt_pk_bf16_f32 v{YR+k}, v{YR+k}, v{YR+k}")
    srd(g, 48, 24, 5120)
    g("s_mov_b64 exec, 0xff")
    for k in range(4):
        g(f"buffer_store_short v{YR+k}, v91, s[48:51], 0 offen offset:{1280*k}")
    l_ep = g.label("ep")
    g("s_cmp_lg_u32 s62, 0")
    g(f"s_cbranch_scc1 {l_ep}")
    g("s_mov_b64 exec, 1")
    g(f"v_mov_b32 v92, {WS_EPOCH}")
    g(f"buffer_store_dword v{TAG}, v92, s[36:39], 0 offen sc1")
    g(f"{l_ep}:")
    g("s_mov_b64 exec, -1")
    g.stamp(13)
    g(f"{l_st}:")
    if C.stamps: stamp_store(g, "s3", range(4, 15), only_wave=4)
    g("s_endpgm")

def gen():
    g = G()
    g(f"{KN}:")
    g("s_cmp_ge_u32 s2, 256")
    g("s_cbranch_scc1 L_end")
    if C.dbgst:
        for k in range(15): g(f"s_mov_b32 s{64+2*k}, 0")
    g.stamp(0)
    g("s_load_dwordx16 s[4:19], s[0:1], 0")
    g("s_load_dwordx8 s[20:27], s[0:1], 64")
    g("s_load_dwordx2 s[28:29], s[0:1], 96")
    g("v_lshrrev_b32 v1, 6, v0")
    g("s_lshr_b32 s30, s2, 3")
    g("v_readfirstlane_b32 s3, v1")
    g("s_and_b32 s31, s2, 7")
    g("v_and_b32 v1, 63, v0")
    if C.qmap == 0:
        g("s_lshr_b32 s32, s31, 2")
        g("s_and_b32 s33, s31, 3")
    elif C.qmap == 1:
        g("s_bfe_u32 s32, s31, 0x10001")
        g("s_lshr_b32 s33, s31, 2")
        g("s_lshl_b32 s33, s33, 1")
        g("s_and_b32 s34, s31, 1")
        g("s_or_b32 s33, s33, s34")
    elif C.qmap == 2:
        g("s_lshr_b32 s32, s31, 1")
        g("s_xor_b32 s32, s32, s31")
        g("s_and_b32 s32, s32, 1")
        g("s_lshr_b32 s33, s31, 1")

    g("s_cmp_ge_u32 s3, 4")
    g("s_cbranch_scc1 L_aux")
    if C.altmask:
        g("s_and_b32 s34, s3, 1")
        g("s_lshl_b32 s35, s32, 1")
        g("s_add_u32 s35, s35, s34")
        g(f"s_lshr_b32 s34, {C.altmask}, s35")
        g("s_and_b32 s34, s34, 1")
        g("s_cmp_eq_u32 s34, 1")
        g("s_cbranch_scc1 L_alt")
        nv = streaming(g)
        g("L_alt:")
        C.kpol, C.vpol = C.altk, C.altv
        streaming(g, "_alt")
    else:
        nv = streaming(g)
    g("L_aux:")
    aux(g)
    g("L_end:")
    g("s_endpgm")
    return g.text(), max(nv, 176)

HEADER = open("cdna_kernels/" + NAME + ".s.ref").read().split("; Override launch geometry")[0]

def build(path):
    body, nv = gen()
    nv = (nv + 3)//4*4
    assert nv <= 256
    txt = HEADER
    txt += "; Override launch geometry by editing the next line (default: block=256,\n"
    txt += f"; @launch grid=(256,1,1) block=(512,1,1) lds={LDS_BYTES}\n"
    txt += '.amdgcn_target "amdgcn-amd-amdhsa--gfx950"\n.text\n'
    txt += f".globl {KN}\n.p2align 8\n.type {KN},@function\n"
    txt += body
    txt += f""".section .rodata,"a"
.p2align 6
.amdhsa_kernel {KN}
  .amdhsa_next_free_vgpr {nv}
  .amdhsa_next_free_sgpr 102
  .amdhsa_accum_offset {nv}
  .amdhsa_group_segment_fixed_size 0
  .amdhsa_kernarg_size 104
  .amdhsa_user_sgpr_count 2
  .amdhsa_user_sgpr_kernarg_segment_ptr 1
  .amdhsa_system_sgpr_workgroup_id_x 1
.end_amdhsa_kernel
"""
    open(path, "w").write(txt)

if __name__ == "__main__":
    ap = argparse.ArgumentParser()
    ap.add_argument("-o", default="k.s")
    ap.add_argument("--stamps", action="store_true")
    ap.add_argument("--win", type=int, default=8)
    ap.add_argument("--sleepg", type=int, default=16)
    ap.add_argument("--kpol", default="nt")
    ap.add_argument("--vpol", default="nt")
    ap.add_argument("--nokx", action="store_true")
    ap.add_argument("--r4", type=int, default=0)
    ap.add_argument("--r2", type=int, default=0)
    ap.add_argument("--qmap", type=int, default=2)
    ap.add_argument("--dbgst", action="store_true")
    ap.add_argument("--pipe", action="store_true")
    ap.add_argument("--gap", type=int, default=6)
    ap.add_argument("--pvdot", action="store_true")
    ap.add_argument("--early", type=int, default=0)
    ap.add_argument("--altmask", type=int, default=0)
    ap.add_argument("--altk", default="nt")
    ap.add_argument("--altv", default="nt")
    a = ap.parse_args()
    C.altmask = a.altmask; C.altk = a.altk.replace("_"," "); C.altv = a.altv.replace("_"," ")
    C.pvdot = a.pvdot; C.early = a.early > 0; C.early_n = a.early
    C.pipe = a.pipe; C.gap = a.gap
    C.dbgst = a.dbgst
    if a.dbgst: a.stamps = True
    C.qmap = a.qmap
    C.stamps = a.stamps; C.win = a.win; C.sleepg = a.sleepg
    C.kpol = a.kpol.replace("_"," "); C.vpol = a.vpol.replace("_"," ")
    C.kx = not a.nokx; C.r4 = a.r4; C.r2 = a.r2
    build(a.o)
```

```python
import sys, argparse, struct

NAME = "parallel_sum__gqa_block_cached__dense_activation_squared_relu__decode"
KN = NAME + "_kernel"

WS_TICK = 0x000000
WS_EPOCH= 0x0F0000
WS_QP   = 0x100000
WS_P1   = 0x300000
WS_Y    = 0x400000
WS_YM   = 0x500000
WS_STAMP= 0x800000
WS_SIZE = 0x1000000
L_XN  = 0
L_QPL = 2048
L_HPL = 10240
L_QL  = 18432
L_HL  = 18944
L_CNT = 19968
L_SP  = 20480
L_ST  = 28672
L_OL  = 28928
L_WT  = 30720
LDS_BYTES = 63488

LOG2E = 1.4426950408889634
OOB = "0x7f000000"

class Cfg:
    spin_max = 200000
    win = 8
    sleepg = 16
    stamps = False
    win2 = 6
    win2_at = 1000
    alt = False
    sz = (4,2,1)
    altmask = 0
    altk = 'nt'
    altv = 'nt'
    pvdot = False
    early = False
    early_n = 4
    tagmask = 15
    pipe = False
    gap = 6
    dbgst = False
    qmap = 2
    kpol = 'nt'; vpol = 'nt'
    kx = True
    r4 = 64; r2 = 24
C = Cfg()

class G:
    def __init__(s):
        s.o = []; s.nl = 0
    def __call__(s, t):
        for line in t.strip("\n").split("\n"):
            line = line.strip()
            s.o.append(line if line.endswith(":") else "    " + line)
    def label(s, base):
        s.nl += 1
        return f"L_{base}_{s.nl}"
    def stamp(s, k):
        if C.stamps: s(f"s_memrealtime s[{64+2*k}:{65+2*k}]")
    def dstamp(s, k, vtmp, op="umax"):
        if not C.dbgst: return
        s("s_memrealtime s[76:77]")
        s("s_mov_b64 s[78:79], exec")
        s("s_waitcnt lgkmcnt(0)")
        s("s_mov_b64 exec, 1")
        s(f"v_mov_b32 v{vtmp}, {4*k}")
        val = "s76" if op == "umax" else None
        if op == "umax":
            s(f"v_mov_b32 v{vtmp+1}, s76")
        else:
            s("s_not_b32 s76, s76")
            s(f"v_mov_b32 v{vtmp+1}, s76")
        s(f"global_atomic_umax v{vtmp}, v{vtmp+1}, s[26:27] sc1")
        s("s_mov_b64 exec, s[78:79]")
    def text(s): return "\n".join(s.o) + "\n"

def f2u(x): return struct.unpack("<I", struct.pack("<f", x))[0]
def fx(x): return f"0x{f2u(x):08x}"

def bf16r(g, dst, src):
    g(f"v_cvt_pk_bf16_f32 v{dst}, v{src}, v{src}")
    g(f"v_and_b32 v{dst}, 0xffff0000, v{dst}")

def multi_xswap(g, regs, tmps, which, op="v_add_f32"):
    for v, t in zip(regs, tmps): g(f"v_mov_b32 v{t}, v{v}")
    g("s_nop 1")
    for v, t in zip(regs, tmps): g(f"v_permlane{which}_swap_b32 v{v}, v{t}")
    g("s_nop 1")
    for v, t in zip(regs, tmps): g(f"{op} v{v}, v{v}, v{t}")

DPPF = "row_mask:0xf bank_mask:0xf"
def row_allreduce(g, regs, op):
    for ctrl in ("row_ror:8", "row_half_mirror", "quad_perm:[3,2,1,0]", "quad_perm:[1,0,3,2]"):
        if len(regs) < 3: g("s_nop 1")
        for v in regs: g(f"{op}_dpp v{v}, v{v}, v{v} {ctrl} {DPPF}")

def srd(g, s, lo, size):
    g(f"s_mov_b32 s{s}, s{lo}\ns_mov_b32 s{s+1}, s{lo+1}\ns_mov_b32 s{s+2}, {size}\ns_mov_b32 s{s+3}, 0x20000")

def stamp_store(g, swave, ks, only_wave):
    if C.dbgst:
        l = g.label("st")
        g("s_waitcnt lgkmcnt(0)")
        g(f"s_cmp_eq_u32 {swave}, {only_wave}")
        g(f"s_cbranch_scc0 {l}")
        g("s_mov_b64 exec, 1")
        for k in ks:
            l2 = g.label("sk")
            g(f"s_cmp_eq_u32 s{64+2*k}, 0")
            g(f"s_cbranch_scc1 {l2}")
            g(f"v_mov_b32 v40, {4*k}")
            g(f"v_mov_b32 v41, s{64+2*k}")
            g("global_atomic_umax v40, v41, s[26:27] sc1")
            if k == 0:
                g(f"s_not_b32 s60, s{64+2*k}")
                g(f"v_mov_b32 v42, s60")
                g(f"global_atomic_umax v40, v42, s[26:27] offset:60 sc1")
            g("s_nop 1")
            g(f"{l2}:")
        g(f"{l}:")
        return
    l = g.label("st")
    g("s_waitcnt lgkmcnt(0)")
    g(f"s_cmp_eq_u32 {swave}, {only_wave}")
    g(f"s_cbranch_scc0 {l}")
    g("s_lshl_b32 s60, s2, 6")
    g(f"s_add_u32 s60, s60, {WS_STAMP}")
    g("s_add_u32 s62, s28, s60\ns_addc_u32 s63, s29, 0")
    g("s_mov_b64 exec, 1")
    g("v_mov_b32 v40, 0")
    for k in ks:
        g(f"v_mov_b32 v41, s{64+2*k}")
        g(f"global_store_dword v40, v41, s[62:63] offset:{4*k}")
        g("s_nop 1")
    g("s_waitcnt vmcnt(0)")
    g(f"{l}:")

TAG = 170
def tagw(g, regs):
    for r in regs: g(f"v_bfi_b32 v{r}, s95, v{TAG}, v{r}")

def spin_tail(g, lp, dn, sleep):
    g("s_add_u32 s58, s58, 1")
    g(f"s_cbranch_vccz {dn}")
    g(f"s_cmp_lt_u32 s58, {C.spin_max}")
    g(f"s_cbranch_scc0 {dn}")
    if sleep: g(f"s_sleep {sleep}")
    g(f"s_branch {lp}")
    g(f"{dn}:")

def tagcheck(g, regs, t0, t1):
    g(f"v_xor_b32 v{t0}, v{regs[0]}, v{TAG}")
    rest = regs[1:]
    while rest:
        if len(rest) >= 2:
            g(f"v_xor_b32 v{t1}, v{rest[0]}, v{TAG}")
            g(f"v_xor_b32 v{t1+1}, v{rest[1]}, v{TAG}")
            g(f"v_or3_b32 v{t0}, v{t0}, v{t1}, v{t1+1}")
            rest = rest[2:]
        else:
            g(f"v_xor_b32 v{t1}, v{rest[0]}, v{TAG}")
            g(f"v_or_b32 v{t0}, v{t0}, v{t1}")
            rest = rest[1:]
    g(f"v_and_b32 v{t0}, {C.tagmask}, v{t0}")
    g(f"v_cmp_ne_u32 vcc, 0, v{t0}")

def poll_tag(g, loads, regs, name, tmp=126, sleep=1):
    lp = g.label("poll"+name); dn = g.label("pdone"+name)
    g("s_mov_b32 s58, 0")
    g(f"{lp}:")
    loads()
    g("s_waitcnt vmcnt(0)")
    tagcheck(g, regs, tmp, tmp+1)
    spin_tail(g, lp, dn, sleep)

def poll_pipe(g, loads, nload, sets, work, name, tmp, gap):
    nreg = loads.nreg
    K = len(sets)
    lp = g.label("pp"+name); dn = g.label("ppd"+name)
    done = [g.label(f"ppk{name}{k}") for k in range(K)]
    g("s_mov_b32 s58, 0")
    for k in range(K):
        loads(sets[k])
        if k < K-1 and gap: g(f"s_sleep {gap}")
    g(f"{lp}:")
    for k in range(K):
        g(f"s_waitcnt vmcnt({nload*(K-1)})")
        tagcheck(g, list(range(sets[k], sets[k]+nreg)), tmp, tmp+1)
        g(f"s_cbranch_vccz {done[k]}")
        loads(sets[k])
    g("s_add_u32 s58, s58, 1")
    g(f"s_cmp_lt_u32 s58, {C.spin_max}")
    g(f"s_cbranch_scc1 {lp}")
    g("s_waitcnt vmcnt(0)")
    for k in range(K):
        g(f"{done[k]}:")
        for r in range(nreg): g(f"v_mov_b32 v{work+r}, v{sets[k]+r}")
        if k < K-1: g(f"s_branch {dn}")
    g(f"{dn}:")

def lds_arrive_wait(g, idx, n):
    lp = g.label("lw")
    g(f"v_mov_b32 v173, {L_CNT + 4*idx}")
    g("v_mov_b32 v174, 1")
    g("s_mov_b64 exec, 1")
    g("ds_add_u32 v173, v174")
    g(f"{lp}:")
    g("ds_read_b32 v174, v173")
    g("s_waitcnt lgkmcnt(0)")
    g("v_readfirstlane_b32 s59, v174")
    g(f"s_cmp_lt_u32 s59, {n}")
    g(f"s_cbranch_scc1 {lp}")
    g("s_mov_b64 exec, -1")

def diag_mfma(g, vAaddr, imm_bp, imm_j, nj, Ws, Ds, vA, masks, lds_base):
    raw = vA
    for j in range(nj):
        for bp in range(2):
            g(f"ds_read_b32 v{raw+2*j+bp}, v{vAaddr} offset:{lds_base + bp*imm_bp + j*imm_j}")
    op = vA + 2*nj
    n = 0
    for j in range(nj):
        for bp in range(2):
            g(f"s_waitcnt lgkmcnt({min(15, 2*nj-1-n)})")
            o = op + 4*(n % 2)
            for q in range(4): g(f"v_and_b32 v{o+q}, v{masks+q}, v{raw+2*j+bp}")
            g("s_nop 1")
            for W, D in zip(Ws, Ds):
                c = "0" if j == 0 else f"v[{D+4*bp}:{D+4*bp+3}]"
                g(f"v_mfma_f32_16x16x32_bf16 v[{D+4*bp}:{D+4*bp+3}], v[{o}:{o+3}], v[{W+4*j}:{W+4*j+3}], {c}")
            n += 1
    g("s_nop 7")

def streaming(g, sfx=''):
    LPT = 16; UB = 4096; NU = 512; NW = 8
    vL16, vTk, vZero, vN, vM, vL = 1, 3, 4, 5, 6, 7
    vAcc = 8; vQ = 16; vS = 20; vU = 36; vK = 48; vV = 112; vKx = 176
    vOffA = 44; vC = 2; vNinf = 240 if C.kx else 176
    vOffB = vNinf + 1
    NSTAT = 3 if C.kx else 2
    g("s_and_b32 s34, s3, 1")
    g("s_lshl_b32 s35, s32, 1")
    g("s_add_u32 s35, s35, s34")
    g("s_lshl_b32 s52, s35, 5")
    g("s_add_u32 s52, s52, s30")
    g("s_lshr_b32 s53, s3, 1")
    g("s_lshl_b32 s54, s33, 1")
    g("s_add_u32 s53, s53, s54")
    g("s_lshl_b32 s54, s52, 21")
    g(f"v_and_b32 v{vC}, 15, v1")
    g(f"v_lshlrev_b32 v{vL16}, 4, v1")
    g("s_lshl_b32 s47, s53, 14")
    def setoff(base, sreg_or_none, add=0, frm=None):
        if frm is None:
            g(f"v_add_u32 v{base}, {sreg_or_none}, v{vL16}")
        else:
            g(f"v_add_u32 v{base}, {add}, v{frm}")
        for k in range(1, 4): g(f"v_add_u32 v{base+k}, {4096*k}, v{base}")
    setoff(vOffA, "s47")
    setoff(vOffB, None, NW*4*UB, vOffA)
    g("s_mov_b32 s43, 0xffff0000")
    g("s_mov_b32 s34, 0x200000\ns_mov_b32 s35, 0x20000\ns_mov_b32 s38, 0x200000\ns_mov_b32 s39, 0x20000")
    g("s_lshl_b32 s55, s52, 8")
    lz = g.label("z")
    g("s_cmp_lg_u32 s3, 0")
    g(f"s_cbranch_scc1 {lz}")
    g(f"v_mov_b32 v36, {L_CNT}")
    for k in range(4): g(f"v_mov_b32 v{48+k}, 0")
    g("ds_write_b128 v36, v[48:51]")
    g("ds_write_b128 v36, v[48:51] offset:16")
    g(f"{lz}:")
    g("s_waitcnt lgkmcnt(0)")
    g("s_add_u32 s32, s6, s54\ns_addc_u32 s33, s7, 0")
    g("s_add_u32 s36, s8, s54\ns_addc_u32 s37, s9, 0")
    g("s_add_u32 s44, s28, s55\ns_addc_u32 s45, s29, 0")
    if WS_TICK: g(f"s_add_u32 s44, s44, {WS_TICK}\ns_addc_u32 s45, s45, 0")
    if not C.early: g("s_barrier")
    def kload(j, base, off): g(f"buffer_load_dwordx4 v[{base+4*j}:{base+4*j+3}], v{off+j//4}, s[32:35], 0 offen offset:{(j%4)*1024} {C.kpol}")
    def vload(j, off): g(f"buffer_load_dwordx4 v[{vV+4*j}:{vV+4*j+3}], v{off+j//4}, s[36:39], 0 offen offset:{(j%4)*1024} {C.vpol}")
    npre = 3*LPT if C.kx else 2*LPT
    for n in range(npre):
        if C.early and n == C.early_n: g("s_barrier")
        wn = C.win if n < C.win2_at else C.win2
        if n >= wn: g(f"s_waitcnt vmcnt({wn-1})")
        if n < LPT: kload(n, vK, vOffA)
        elif n < 2*LPT: vload(n-LPT, vOffA)
        else: kload(n-2*LPT, vKx, vOffB)
    g.stamp(1)
    g(f"v_mov_b32 v{vZero}, 0\nv_mov_b32 v{vN}, 4\nv_mov_b32 v{vM}, 0xff800000\nv_mov_b32 v{vL}, 0")
    g(f"v_mov_b32 v{vNinf}, 0xff800000")
    for k in range(8): g(f"v_mov_b32 v{vAcc+k}, 0")
    g("s_mov_b32 s48, 0xcccccccc\ns_mov_b32 s49, 0xcccccccc\ns_mov_b32 s50, 0xaaaaaaaa\ns_mov_b32 s51, 0xaaaaaaaa")
    g(f"v_and_b32 v36, 0xf0, v{vL16}")
    g("s_and_b32 s54, s3, 1")
    g("s_lshl_b32 s54, s54, 8")
    g("v_add_u32 v36, s54, v36")
    g("s_mov_b32 s60, 16")
    g("s_mov_b32 s61, 4")
    g("s_barrier")
    g(f"ds_read_b128 v[{vQ}:{vQ+3}], v36 offset:{L_QL}")
    g("s_waitcnt lgkmcnt(0)")
    g.stamp(2)

    def atomic():
        g("s_mov_b64 exec, 1")
        g(f"global_atomic_add v{vTk}, v{vZero}, v{vN}, s[44:45] sc0 sc1")
        g("s_mov_b64 exec, -1")
    def kphase(kreg, wait, refill):
        for j in range(LPT):
            w = wait(j)
            if w is not None: g(f"s_waitcnt vmcnt({w})")
            k = kreg + 4*j
            g(f"v_dot2_f32_bf16 v{vS+j}, v{k}, v{vQ}, 0")
            for t in range(1, 4): g(f"v_dot2_f32_bf16 v{vS+j}, v{k+t}, v{vQ+t}, v{vS+j}")
            if refill is not None: kload(j, kreg, refill)
        if refill is None: g("s_nop 1")
    vP = vS+3
    def softmax(mask):
        for j in range(8):
            g(f"v_add_f32_dpp v{vS+j}, v{vS+j}, v{vS+j} row_ror:8 row_mask:0xf bank_mask:0x3")
            g(f"v_add_f32_dpp v{vS+j}, v{vS+j+8}, v{vS+j+8} row_ror:8 row_mask:0xf bank_mask:0xc")
        for j in range(4):
            g(f"v_add_f32_dpp v{vS+j}, v{vS+j}, v{vS+j} row_half_mirror row_mask:0xf bank_mask:0x5")
            g(f"v_add_f32_dpp v{vS+j}, v{vS+j+4}, v{vS+j+4} row_half_mirror row_mask:0xf bank_mask:0xa")
        u0, w0, u1, w1 = vU, vU+1, vU+2, vU+3
        g(f"v_add_f32_dpp v{u0}, v{vS+0}, v{vS+0} quad_perm:[3,2,1,0] {DPPF}")
        g(f"v_add_f32_dpp v{w0}, v{vS+2}, v{vS+2} quad_perm:[3,2,1,0] {DPPF}")
        g(f"v_add_f32_dpp v{u1}, v{vS+1}, v{vS+1} quad_perm:[3,2,1,0] {DPPF}")
        g(f"v_add_f32_dpp v{w1}, v{vS+3}, v{vS+3} quad_perm:[3,2,1,0] {DPPF}")
        if mask: g(f"v_cmp_gt_u32 vcc, s60, v{vC}")
        g(f"v_cndmask_b32 v{vS+0}, v{u0}, v{w0}, s[48:49]")
        g(f"v_cndmask_b32 v{vS+1}, v{u1}, v{w1}, s[48:49]")
        g("s_nop 1")
        g(f"v_add_f32_dpp v{u0}, v{vS+0}, v{vS+0} quad_perm:[1,0,3,2] {DPPF}")
        g(f"v_add_f32_dpp v{w0}, v{vS+1}, v{vS+1} quad_perm:[1,0,3,2] {DPPF}")
        sc = vS
        g(f"v_cndmask_b32 v{sc}, v{u0}, v{w0}, s[50:51]")
        g(f"v_cvt_pk_bf16_f32 v{sc}, v{sc}, v{sc}")
        g(f"v_and_b32 v{sc}, s43, v{sc}")
        g(f"v_mul_f32 v{sc}, {fx(128**-0.5)}, v{sc}")
        g(f"v_cvt_pk_bf16_f32 v{sc}, v{sc}, v{sc}")
        g(f"v_and_b32 v{sc}, s43, v{sc}")
        if mask: g(f"v_cndmask_b32 v{sc}, v{vNinf}, v{sc}, vcc")
        mx = vS+1; al = vS+2
        g(f"v_max_f32 v{mx}, v{sc}, v{vM}")
        for ctrl in ("row_ror:8", "row_half_mirror", "quad_perm:[3,2,1,0]", "quad_perm:[1,0,3,2]"):
            g("s_nop 1")
            g(f"v_max_f32_dpp v{mx}, v{mx}, v{mx} {ctrl} {DPPF}")
        g(f"v_sub_f32 v{al}, v{vM}, v{mx}")
        g(f"v_sub_f32 v{vP}, v{sc}, v{mx}")
        g(f"v_mul_f32 v{al}, {fx(LOG2E)}, v{al}")
        g(f"v_mul_f32 v{vP}, {fx(LOG2E)}, v{vP}")
        g(f"v_exp_f32 v{al}, v{al}")
        g(f"v_exp_f32 v{vP}, v{vP}")
        g(f"v_mov_b32 v{vM}, v{mx}")
        if C.pvdot:
            g(f"v_cvt_pk_bf16_f32 v{vS+5}, v{vZero}, v{vP}")
            g(f"v_cvt_pk_bf16_f32 v{vS+4}, v{vP}, v{vZero}")
            g(f"v_fma_f32 v{vL}, v{vL}, v{al}, v{vS+5}")
        else:
            g(f"v_fma_f32 v{vL}, v{vL}, v{al}, v{vP}")
        for k in range(8): g(f"v_mul_f32 v{vAcc+k}, v{vAcc+k}, v{al}")
    def vphase(wait, refill, vreg=None, rk=None):
        for j in range(LPT):
            w = wait(j) if callable(wait) else wait
            if w is not None: g(f"s_waitcnt vmcnt({w})")
            v = (vV if vreg is None else vreg) + 4*j
            if rk is not None:
                assert C.pvdot
                for t in range(4):
                    g(f"v_dot2c_f32_bf16_dpp v{vAcc+2*t}, v{vS+4}, v{v+t} row_newbcast:{j} {DPPF}")
                    g(f"v_dot2c_f32_bf16_dpp v{vAcc+2*t+1}, v{vS+5}, v{v+t} row_newbcast:{j} {DPPF}")
                if rk == 'K': kload(j, vreg, refill)
                continue
            if C.pvdot:
                for t in range(4):
                    g(f"v_dot2c_f32_bf16_dpp v{vAcc+2*t}, v{vS+4}, v{v+t} row_newbcast:{j} {DPPF}")
                    g(f"v_dot2c_f32_bf16_dpp v{vAcc+2*t+1}, v{vS+5}, v{v+t} row_newbcast:{j} {DPPF}")
                vload(j, refill)
                continue
            for t in range(4):
                g(f"v_lshlrev_b32 v{vU+2*t}, 16, v{v+t}")
                g(f"v_and_b32 v{vU+2*t+1}, s43, v{v+t}")
            vload(j, refill)
            for k in range(8):
                g(f"v_fmac_f32_dpp v{vAcc+k}, v{vP}, v{vU+k} row_newbcast:{j} {DPPF}")

    if C.alt:
        def vload_into(j, base, off): g(f"buffer_load_dwordx4 v[{base+4*j}:{base+4*j+3}], v{off+j//4}, s[36:39], 0 offen offset:{(j%4)*1024} {C.vpol}")
        def kphase_alt(kreg, wait, voff):
            for j in range(LPT):
                w = wait(j)
                if w is not None: g(f"s_waitcnt vmcnt({w})")
                k = kreg + 4*j
                g(f"v_dot2_f32_bf16 v{vS+j}, v{k}, v{vQ}, 0")
                for t in range(1, 4): g(f"v_dot2_f32_bf16 v{vS+j}, v{k+t}, v{vQ+t}, v{vS+j}")
                if voff is not None: vload_into(j, kreg, voff)
            if voff is None: g("s_nop 1")
        kphase_alt(vK, lambda j: 47, vOffB)
        softmax(False)
        vphase(lambda j: 32 if j == 0 else None, None, vV, 'none')
        setoff(vOffA, None, NW*4*UB, vOffB)
        kphase_alt(vKx, lambda j: 16 if j == 0 else None, None)
        softmax(False)
        vphase(15, vOffA, vK, 'K')
        g(f"L_loop{sfx}:")
        atomic()
        kphase_alt(vK, lambda j: 16, vOffA)
        softmax(False)
        g("s_waitcnt vmcnt(15)")
        g(f"v_readfirstlane_b32 s46, v{vTk}")
        g(f"s_add_u32 s46, s46, {NSTAT*NW*4}")
        g("s_lshl_b32 s47, s46, 12")
        g(f"s_cmp_lt_u32 s46, {NU}")
        g("s_cselect_b32 s34, 0x200000, 0")
        setoff(vOffA, "s47")
        vphase(15, vOffA, vK, 'K')
        g(f"s_cmp_lt_u32 s46, {NU}")
        g(f"s_cbranch_scc1 L_loop{sfx}")
    elif C.kx:
        setoff(vOffA, None, NW*4*UB, vOffB)
        kphase(vK, lambda j: 47, vOffA)
        softmax(False)
        vphase(47, vOffB)
        atomic()
        kphase(vKx, lambda j: 33 if j == 0 else None, None)
        softmax(False)
        vphase(16, vOffA)
        g("s_mov_b32 s62, 16")
        g("s_waitcnt vmcnt(16)")
        g(f"s_branch L_top2{sfx}")
    else:
        g(f"s_lshl_b32 s46, s53, 2")
        g(f"s_add_u32 s46, s46, {NW*4}")
        g("s_mov_b32 s62, 16")
        g(f"s_branch L_entry{sfx}")
    if not C.alt:
        g(f"L_top{sfx}:")
        g(f"s_waitcnt vmcnt({2*LPT})")
        g(f"L_top2{sfx}:")
        g(f"v_readfirstlane_b32 s46, v{vTk}")
        g(f"s_add_u32 s46, s46, {NSTAT*NW*4}")
        g(f"L_entry{sfx}:")
        g("s_mov_b32 s60, s62")
        g("s_add_u32 s47, s46, s61")
        g(f"s_min_u32 s52, s47, {NU}")
        g("s_sub_u32 s62, s52, s46")
        g("s_lshl_b32 s62, s62, 2")
        g("s_lshl_b32 s52, s52, 12")
        g(f"s_cmp_ge_u32 s46, {NU}")
        g("s_cselect_b32 s52, 0, s52")
        g("s_mov_b32 s34, s52")
        g("s_mov_b32 s38, s52")
        g(f"s_mov_b32 s61, {C.sz[2]}")
        g(f"s_cmp_lt_u32 s47, {NU-C.r2}")
        g(f"s_cselect_b32 s61, {C.sz[1]}, s61")
        g(f"s_cmp_lt_u32 s47, {max(NU-C.r4,0)}")
        g("s_cselect_b32 s61, 4, s61")
        g(f"v_mov_b32 v{vN}, s61")
        atomic()
        g("s_lshl_b32 s47, s46, 12")
        setoff(vOffA, "s47")
        kphase(vK, lambda j: 32, vOffA)
        softmax(True)
        vphase(32, vOffA)
        g(f"s_cmp_lt_u32 s46, {NU}")
        g(f"s_cbranch_scc1 L_top{sfx}")
    g(f"L_done{sfx}:")
    g.stamp(3)
    g(f"v_lshlrev_b32 v45, 1, v{vL16}")
    g("s_lshl_b32 s54, s3, 11")
    g("v_add_u32 v45, s54, v45")
    g(f"ds_write_b128 v45, v[{vAcc}:{vAcc+3}] offset:{L_SP}")
    g(f"ds_write_b128 v45, v[{vAcc+4}:{vAcc+7}] offset:{L_SP+16}")
    row_allreduce(g, [vL], "v_add_f32")
    g(f"v_lshrrev_b32 v46, 8, v{vL16}")
    g("v_lshlrev_b32 v46, 3, v46")
    g("s_lshl_b32 s54, s3, 5")
    g("v_add_u32 v46, s54, v46")
    g("s_mov_b32 exec_lo, 0x00010001\ns_mov_b32 exec_hi, 0x00010001")
    g(f"ds_write_b64 v46, v[{vM}:{vM+1}] offset:{L_ST}")
    g("s_mov_b64 exec, -1")
    g("s_waitcnt lgkmcnt(0)")
    g("s_barrier")
    if C.stamps: stamp_store(g, "s3", range(0, 4), only_wave=0)
    g("s_endpgm")
    return vOffB + 4

def aux(g):
    g("s_sub_u32 s34, s3, 4")
    vLane, vC, vG, vHalf = 1, 2, 3, 12
    MK = 104
    g(f"v_and_b32 v{vC}, 15, v{vLane}")
    g(f"v_lshrrev_b32 v{vG}, 4, v{vLane}")
    g(f"v_lshlrev_b32 v11, 4, v{vC}")
    g("s_mul_i32 s52, s34, 1280")
    g("s_mul_i32 s53, s31, 160")
    g("s_add_u32 s53, s53, s52")
    g(f"v_cmp_gt_u32 vcc, 40, v{vLane}")
    g(f"v_lshlrev_b32 v9, 5, v{vLane}")
    g("v_add_u32 v9, s52, v9")
    g(f"v_lshlrev_b32 v15, 2, v{vLane}")
    g("v_add_u32 v15, s53, v15")
    g(f"v_mov_b32 v13, {OOB}")
    g("v_cndmask_b32 v9, v13, v9, vcc")
    g("v_cndmask_b32 v15, v13, v15, vcc")
    g(f"v_lshlrev_b32 v10, 13, v{vG}")
    g("v_add_u32 v10, v10, v11")
    g("s_mul_i32 s35, s31, 80")
    g("s_mul_i32 s52, s34, 20")
    g("s_add_u32 s35, s35, s52")
    g("s_lshl_b32 s52, s35, 13")
    g("s_lshl_b32 s53, s30, 8")
    g("s_add_u32 s52, s52, s53")
    g("s_mov_b32 s42, 5120\ns_mov_b32 s43, 0x20000\ns_mov_b32 s46, 5242880\ns_mov_b32 s47, 0x20000")
    g("s_waitcnt lgkmcnt(0)")
    g("s_mov_b32 s40, s4\ns_mov_b32 s41, s5")
    X = 16
    g(f"buffer_load_dwordx4 v[{X}:{X+3}], v9, s[40:43], 0 offen")
    g(f"buffer_load_dwordx4 v[{X+4}:{X+7}], v9, s[40:43], 0 offen offset:16")
    g(f"buffer_load_dword v{X+8}, v15, s[40:43], 0 offen")
    g("s_mov_b32 s44, s10\ns_mov_b32 s45, s11")
    WQ = 36; W1 = 56; B1R = 76
    for j in range(5):
        g(f"buffer_load_dwordx4 v[{WQ+4*j}:{WQ+4*j+3}], v10, s[44:47], s52 offen nt")
        if j < 4: g("s_add_u32 s52, s52, 32768")
    g(f"s_load_dword s96, s[28:29], {WS_EPOCH}")
    srd(g, 36, 28, WS_SIZE)
    g("s_lshl_b32 s54, s32, 6")
    g("s_add_u32 s54, s54, s30")
    g("s_lshl_b32 s54, s54, 8")
    if WS_TICK: g(f"s_add_u32 s54, s54, {WS_TICK}")
    g("s_cmp_lg_u32 s33, 0")
    g(f"s_cselect_b32 s54, {OOB}, s54")
    g("s_cmp_lg_u32 s34, 2")
    g(f"s_cselect_b32 s54, {OOB}, s54")
    g(f"v_lshlrev_b32 v171, 13, v{vLane}")
    g(f"v_cmp_gt_u32 vcc, 2, v{vLane}")
    g(f"v_mov_b32 v172, {OOB}")
    g("v_add_u32 v171, s54, v171")
    g("v_cndmask_b32 v171, v172, v171, vcc")
    g("v_mov_b32 v172, 0")
    g("buffer_store_dword v172, v171, s[36:39], 0 offen sc1")
    NCLR = 1
    g("s_barrier")
    g(f"v_lshlrev_b32 v8, 4, v{vLane}")
    g(f"s_mov_b32 s95, {C.tagmask}")
    g("s_mov_b32 s97, 255\ns_mov_b32 s98, 255\ns_mov_b32 s99, 0\ns_mov_b32 s62, 255")
    g("s_sub_u32 s52, s31, 1")
    g("s_cmp_lt_u32 s31, 3\ns_cselect_b32 s97, s31, s97")
    g("s_cmp_eq_u32 s31, 4\ns_cselect_b32 s97, s52, s97")
    g("s_cmp_eq_u32 s31, 5\ns_cselect_b32 s97, s52, s97")
    g("s_mul_i32 s52, s30, 3")
    g("s_cmp_eq_u32 s31, 3\ns_cselect_b32 s98, 0, s98\ns_cselect_b32 s99, 2, s99\ns_cselect_b32 s62, s52, s62")
    g("s_add_u32 s52, s52, 1")
    g("s_cmp_eq_u32 s31, 6\ns_cselect_b32 s98, 2, s98\ns_cselect_b32 s99, 2, s99\ns_cselect_b32 s62, s52, s62")
    g("s_add_u32 s52, s52, 1")
    g("s_cmp_eq_u32 s31, 7\ns_cselect_b32 s98, 4, s98\ns_cselect_b32 s99, 1, s99\ns_cselect_b32 s62, s52, s62")
    g("s_lshl_b32 s52, s30, 2")
    g("s_lshl_b32 s53, s32, 1")
    g("s_add_u32 s52, s52, s53")
    g("s_lshl_b32 s52, s52, 2")
    g("s_add_u32 s52, s52, s33")
    g("s_lshl_b32 s52, s52, 10")
    g(f"s_add_u32 s57, s52, {WS_P1}")
    g("s_mul_i32 s56, s30, 5")
    g(f"v_and_b32 v100, 7, v{vLane}")
    g("v_lshrrev_b32 v101, 1, v100")
    g("v_and_b32 v100, 1, v100")
    g("v_lshlrev_b32 v100, 4, v100")
    g("v_mov_b32 v102, 0xffff")
    g("v_lshlrev_b32 v102, v100, v102")
    for q in range(4):
        g(f"v_cmp_eq_u32 vcc, {q}, v101")
        g("s_nop 1")
        g(f"v_cndmask_b32 v{MK+q}, 0, v102, vcc")
    g(f"v_lshrrev_b32 v{vHalf}, 3, v{vLane}")
    g(f"v_and_b32 v{vHalf}, 1, v{vHalf}")
    g(f"v_mul_u32_u24 v102, 320, v{vHalf}")
    g("s_mul_i32 s52, s34, 20")
    g(f"v_add_u32 v79, s52, v{vG}")
    g("v_lshlrev_b32 v79, 2, v79")
    g("v_add_u32 v102, v102, v79")
    g("s_mul_i32 s52, s34, 320")
    g(f"v_lshlrev_b32 v79, 3, v{vLane}")
    g("v_add_u32 v79, s52, v79")
    g("v_mov_b32 v90, 0x3f803f80")
    g("v_mov_b32 v91, 0\nv_mov_b32 v92, 0\nv_mov_b32 v93, 0\nv_mov_b32 v94, 0")
    g(f"v_lshrrev_b32 v100, 1, v{vG}")
    g("v_lshlrev_b32 v100, 9, v100")
    g(f"v_lshlrev_b32 v101, 5, v{vC}")
    g("v_add_u32 v100, v100, v101")
    g(f"v_and_b32 v101, 1, v{vG}")
    g("v_lshlrev_b32 v101, 4, v101")
    g("v_add_u32 v103, v100, v101")
    g(f"v_mul_u32_u24 v14, 1280, v{vG}")
    g("v_add_u32 v14, v14, v11")
    g(f"v_and_b32 v109, 31, v{vLane}")
    g("v_lshlrev_b32 v13, 4, v109")
    g(f"s_waitcnt vmcnt({5+NCLR})")
    g.stamp(4)
    for t in range(0, 8, 2):
        g(f"v_dot2c_f32_bf16 v91, v{X+t}, v90")
        g(f"v_dot2c_f32_bf16 v92, v{X+t}, v{X+t}")
        g(f"v_dot2c_f32_bf16 v93, v{X+t+1}, v90")
        g(f"v_dot2c_f32_bf16 v94, v{X+t+1}, v{X+t+1}")
    g(f"v_lshlrev_b32 v95, 16, v{X+8}")
    g(f"v_and_b32 v96, 0xffff0000, v{X+8}")
    g("s_nop 0")
    g("v_add_f32 v91, v91, v93")
    g("v_add_f32 v92, v92, v94")
    row_allreduce(g, [91, 92], "v_add_f32")
    multi_xswap(g, [91, 92], [93, 94], 16)
    multi_xswap(g, [91, 92], [93, 94], 32)
    g(f"v_mul_f32 v91, {fx(1/640)}, v91")
    g(f"v_mul_f32 v92, {fx(1/640)}, v92")
    g("v_fma_f32 v92, -v91, v91, v92")
    g("v_max_f32 v92, 0, v92")
    g("v_cvt_pk_bf16_f32 v91, v91, v92")
    g("v_and_b32 v92, 0xffff0000, v91")
    g("v_lshlrev_b32 v91, 16, v91")
    g(f"v_add_f32 v92, {fx(1e-5)}, v92")
    g("v_sub_f32 v95, v95, v91")
    g("v_sub_f32 v96, v96, v91")
    bf16r(g, 92, 92)
    g("v_cvt_pk_bf16_f32 v95, v95, v96")
    g("v_sqrt_f32 v92, v92")
    g("v_and_b32 v96, 0xffff0000, v95")
    g("v_lshlrev_b32 v95, 16, v95")
    bf16r(g, 92, 92)
    g("v_rcp_f32 v93, v92")
    g("s_nop 0")
    g("v_mul_f32 v97, v95, v93")
    g("v_mul_f32 v98, v96, v93")
    g("v_fma_f32 v99, -v97, v92, v95")
    g("v_fma_f32 v100, -v98, v92, v96")
    g("v_fma_f32 v97, v99, v93, v97")
    g("v_fma_f32 v98, v100, v93, v98")
    g("v_cvt_pk_bf16_f32 v99, v98, v98")
    g("v_cvt_pk_bf16_f32 v98, v97, v97")
    g("s_mov_b32 exec_hi, 0xff")
    g(f"ds_write_b64 v79, v[98:99] offset:{L_XN}")
    g("s_mov_b64 exec, -1")
    g("s_waitcnt lgkmcnt(0)")
    lds_arrive_wait(g, 0, 4)
    g(f"s_waitcnt vmcnt({NCLR})")
    g.stamp(14)
    DQ = 148; DH = 156
    diag_mfma(g, 102, 640, 16, 5, [WQ], [DQ], 108, MK, L_XN)
    g("s_lshl_b32 s52, s34, 11")
    g("v_add_u32 v100, s52, v103")
    g(f"ds_write_b128 v100, v[{DQ}:{DQ+3}] offset:{L_QPL}")
    g(f"ds_write_b128 v100, v[{DQ+4}:{DQ+7}] offset:{L_QPL+1024}")
    g("s_waitcnt vmcnt(0) lgkmcnt(0)")
    g("s_add_u32 s96, s96, 1")
    g(f"v_mov_b32 v{TAG}, s96")
    lds_arrive_wait(g, 1, 4)
    g.stamp(5)
    def sum4_lds(vaddr, R, base, stride=2048):
        for a2 in range(4):
            g(f"ds_read_b128 v[{R+4*a2}:{R+4*a2+3}], v{vaddr} offset:{base + a2*stride}")
        g("s_waitcnt lgkmcnt(0)")
        for k in range(4): g(f"v_add_f32 v{R+k}, v{R+k}, v{R+4+k}")
        for k in range(4): g(f"v_add_f32 v{R+8+k}, v{R+8+k}, v{R+12+k}")
        for k in range(4): g(f"v_add_f32 v{R+k}, v{R+k}, v{R+8+k}")
    g("s_lshl_b32 s52, s34, 9")
    g("v_add_u32 v15, s52, v13")
    g("s_lshl_b32 s100, s2, 12")
    g(f"s_add_u32 s100, s100, {WS_QP}")
    sum4_lds(15, 16, L_QPL)
    tagw(g, range(16, 20))
    g("s_mov_b32 exec_hi, 0")
    g("buffer_store_dwordx4 v[16:19], v15, s[36:39], s100 offen sc1")
    g("s_mov_b64 exec, -1")
    g.stamp(6)
    GQ = 112
    l_noq = g.label("noq")
    g("s_cmp_ge_u32 s34, 2")
    g(f"s_cbranch_scc1 {l_noq}")
    g("s_lshl_b32 s52, s30, 15")
    g("s_lshl_b32 s53, s32, 1")
    g("s_add_u32 s53, s53, s34")
    g("s_lshl_b32 s53, s53, 9")
    g("s_add_u32 s52, s52, s53")
    g(f"s_add_u32 s52, s52, {WS_QP}")
    g(f"s_sleep {C.sleepg}")
    g(f"v_lshlrev_b32 v{GQ+16}, 12, v{vLane}")
    g(f"v_add_u32 v{GQ+16}, 508, v{GQ+16}")
    g("s_mov_b64 exec, 0xff")
    def lightload(): g(f"buffer_load_dword v{GQ}, v{GQ+16}, s[36:39], s52 offen sc1")
    poll_tag(g, lightload, [GQ], "ql")
    g("s_mov_b64 exec, -1")
    g(f"v_lshrrev_b32 v{GQ+16}, 5, v{vLane}")
    g(f"v_lshlrev_b32 v{GQ+16}, 12, v{GQ+16}")
    g(f"v_add_u32 v{GQ+16}, v{GQ+16}, v13")
    def qloads():
        g("s_mov_b32 s53, s52")
        for t in range(4):
            g(f"buffer_load_dwordx4 v[{GQ+4*t}:{GQ+4*t+3}], v{GQ+16}, s[36:39], s53 offen sc1")
            if t < 3: g("s_add_u32 s53, s53, 8192")
    poll_tag(g, qloads, list(range(GQ, GQ+16)), "q", tmp=GQ+18)
    for k in range(4): g(f"v_add_f32 v{GQ+k}, v{GQ+k}, v{GQ+4+k}")
    for k in range(4): g(f"v_add_f32 v{GQ+8+k}, v{GQ+8+k}, v{GQ+12+k}")
    for k in range(4): g(f"v_add_f32 v{GQ+k}, v{GQ+k}, v{GQ+8+k}")
    multi_xswap(g, [GQ+k for k in range(4)], [GQ+4+k for k in range(4)], 32)
    g(f"v_cvt_pk_bf16_f32 v{GQ}, v{GQ}, v{GQ+1}")
    g(f"v_cvt_pk_bf16_f32 v{GQ+1}, v{GQ+2}, v{GQ+3}")
    g("v_lshrrev_b32 v17, 1, v13")
    g("s_lshl_b32 s52, s34, 8")
    g("v_add_u32 v17, s52, v17")
    g(f"ds_write_b64 v17, v[{GQ}:{GQ+1}] offset:{L_QL}")
    g("s_waitcnt lgkmcnt(0)")
    g(f"{l_noq}:")
    g.stamp(7)
    g("s_barrier")
    g.stamp(8)
    srd(g, 48, 16, 2211840)
    g(f"v_cmp_gt_u32 vcc, 7, v{vC}")
    g(f"v_mul_u32_u24 v78, 3456, v{vG}")
    g("v_add_u32 v78, v78, v11")
    g(f"v_mov_b32 v79, {OOB}")
    g("v_cndmask_b32 v78, v79, v78, vcc")
    g("s_mul_i32 s54, s35, 3456")
    g("s_mul_i32 s55, s30, 108")
    g("s_add_u32 s54, s54, s55")
    for j in range(5):
        g(f"buffer_load_dwordx4 v[{W1+4*j}:{W1+4*j+3}], v78, s[48:51], s54 offen nt")
        if j < 4: g("s_add_u32 s54, s54, 13824")
    g("s_waitcnt vmcnt(0)")
    diag_mfma(g, 102, 640, 16, 5, [W1], [DH], 108, MK, L_XN)
    g("s_lshl_b32 s52, s34, 11")
    g("v_add_u32 v100, s52, v103")
    g(f"ds_write_b128 v100, v[{DH}:{DH+3}] offset:{L_HPL}")
    g(f"ds_write_b128 v100, v[{DH+4}:{DH+7}] offset:{L_HPL+1024}")
    g("s_waitcnt lgkmcnt(0)")
    lds_arrive_wait(g, 4, 4)
    sum4_lds(15, 28, L_HPL)
    tagw(g, range(28, 32))
    g("s_lshl_b32 s52, s34, 8")
    g("v_add_u32 v100, s52, v13")
    g("s_add_u32 s52, s100, 2048")
    g("s_mov_b64 exec, 0xffff")
    g("buffer_store_dwordx4 v[28:31], v100, s[36:39], s52 offen sc1")
    g("s_mov_b64 exec, -1")
    WB = 16; SC = 48; DD = 80
    l_wo = g.label("wo"); l_b3 = g.label("b3")
    g("s_cmp_eq_u32 s99, 0")
    g(f"s_cbranch_scc1 {l_wo}")
    srd(g, 48, 18, 3456)
    g("s_mul_i32 s52, s30, 108")
    g(f"v_lshlrev_b32 v15, 3, v{vC}")
    g("v_add_u32 v15, s52, v15")
    g(f"buffer_load_dwordx2 v[{B1R}:{B1R+1}], v15, s[48:51], 0 offen")
    srd(g, 48, 20, 2211840)
    g("s_mul_i32 s52, s30, 54")
    g("s_lshl_b32 s53, s34, 4")
    g("s_add_u32 s52, s52, s53")
    g("s_mul_i32 s52, s52, 1280")
    g("s_lshl_b32 s54, s98, 8")
    g("s_add_u32 s52, s52, s54")
    g(f"v_add_u32 v78, s53, v{vG}")
    for jj in range(4):
        g(f"v_add_u32 v{88+jj}, s52, v14")
        g(f"v_cmp_gt_u32 vcc, {54-4*jj}, v78")
        g(f"v_mov_b32 v92, {OOB}")
        g("s_add_u32 s52, s52, 5120")
        g(f"v_cndmask_b32 v{88+jj}, v92, v{88+jj}, vcc")
    for jj in range(4):
        g(f"buffer_load_dwordx4 v[{WB+4*jj}:{WB+4*jj+3}], v{88+jj}, s[48:51], 0 offen nt")
    l_u1 = g.label("u1")
    g("s_cmp_lt_u32 s99, 2")
    g(f"s_cbranch_scc1 {l_u1}")
    for jj in range(4):
        g(f"buffer_load_dwordx4 v[{WB+16+4*jj}:{WB+16+4*jj+3}], v{88+jj}, s[48:51], 0 offen offset:256 nt")
    g(f"{l_u1}:")
    g("s_lshl_b32 s52, s30, 15")
    g("s_lshl_b32 s53, s34, 8")
    g("s_add_u32 s52, s52, s53")
    g(f"s_add_u32 s52, s52, {WS_QP+2048}")
    g(f"v_lshlrev_b32 v{GQ+16}, 12, v{vG}")
    g(f"v_add_u32 v{GQ+16}, v{GQ+16}, v11")
    def hloads():
        g(f"buffer_load_dwordx4 v[{GQ}:{GQ+3}], v{GQ+16}, s[36:39], s52 offen sc1")
        g("s_add_u32 s53, s52, 16384")
        g(f"buffer_load_dwordx4 v[{GQ+4}:{GQ+7}], v{GQ+16}, s[36:39], s53 offen sc1")
    poll_tag(g, hloads, list(range(GQ, GQ+8)), "h", tmp=GQ+18, sleep=4)
    for k in range(4): g(f"v_add_f32 v{GQ+k}, v{GQ+k}, v{GQ+4+k}")
    multi_xswap(g, [GQ+k for k in range(4)], [GQ+4+k for k in range(4)], 16)
    multi_xswap(g, [GQ+k for k in range(4)], [GQ+4+k for k in range(4)], 32)
    g(f"v_lshlrev_b32 v52, 16, v{B1R}\nv_and_b32 v53, 0xffff0000, v{B1R}\nv_lshlrev_b32 v54, 16, v{B1R+1}\nv_and_b32 v55, 0xffff0000, v{B1R+1}")
    for k in range(4): bf16r(g, GQ+k, GQ+k)
    for k in range(4): g(f"v_add_f32 v{GQ+k}, v{GQ+k}, v{52+k}")
    for k in range(4): bf16r(g, GQ+k, GQ+k)
    for k in range(4): g(f"v_max_f32 v{GQ+k}, 0, v{GQ+k}")
    for k in range(4): g(f"v_mul_f32 v{GQ+k}, v{GQ+k}, v{GQ+k}")
    for k in range(4): g(f"v_cvt_pk_bf16_f32 v{GQ+k}, v{GQ+k}, v{GQ+k}")
    g(f"v_lshlrev_b32 v52, 2, v{vC}")
    for k in range(4):
        g(f"v_cmp_gt_u32 vcc, {54-k}, v52")
        g("s_nop 1")
        g(f"v_cndmask_b32 v{GQ+k}, 0, v{GQ+k}, vcc")
    g("s_lshl_b32 s52, s34, 8")
    g("v_add_u32 v101, s52, v11")
    g("s_mov_b64 exec, 0xffff")
    g(f"ds_write_b128 v101, v[{GQ}:{GQ+3}] offset:{L_HL}")
    g("s_mov_b64 exec, -1")
    g("s_waitcnt lgkmcnt(0)")
    lds_arrive_wait(g, 2, 4)
    g(f"v_lshlrev_b32 v79, 8, v{vHalf}")
    g("v_lshlrev_b32 v78, 2, v78")
    g("v_add_u32 v78, v78, v79")
    g("s_waitcnt vmcnt(0)")
    DD2 = 92
    diag_mfma(g, 78, 512, 16, 4, [WB, WB+16], [DD, DD2], SC, MK, L_HL)
    g("s_lshl_b32 s52, s34, 11")
    g("v_add_u32 v100, s52, v103")
    g(f"ds_write_b128 v100, v[{DD}:{DD+3}] offset:{L_QPL}")
    g(f"ds_write_b128 v100, v[{DD+4}:{DD+7}] offset:{L_QPL+1024}")
    g(f"ds_write_b128 v100, v[{DD2}:{DD2+3}] offset:{L_HPL}")
    g(f"ds_write_b128 v100, v[{DD2+4}:{DD2+7}] offset:{L_HPL+1024}")
    g("s_waitcnt lgkmcnt(0)")
    lds_arrive_wait(g, 3, 4)
    g(f"v_lshrrev_b32 v108, 5, v{vLane}")
    g(f"v_mul_u32_u24 v110, {L_HPL-L_QPL}, v108")
    g(f"v_and_b32 v109, 31, v{vLane}")
    g("s_lshl_b32 s52, s34, 5")
    g("v_add_u32 v109, s52, v109")
    g("v_lshlrev_b32 v111, 2, v109")
    g("v_add_u32 v110, v110, v111")
    for a2 in range(4):
        for bb in range(4):
            g(f"ds_read_b32 v{112+4*a2+bb}, v110 offset:{L_QPL + a2*2048 + bb*512}")
    g("s_waitcnt lgkmcnt(0)")
    for k in range(4): g(f"v_add_f32 v{112+k}, v{112+k}, v{116+k}")
    for k in range(4): g(f"v_add_f32 v{120+k}, v{120+k}, v{124+k}")
    for k in range(4): g(f"v_add_f32 v{112+k}, v{112+k}, v{120+k}")
    tagw(g, range(112, 116))
    g("s_add_u32 s52, s56, s98")
    g("s_lshl_b32 s52, s52, 11")
    g(f"s_add_u32 s52, s52, {WS_YM}")
    g("v_lshlrev_b32 v110, 11, v108")
    g("v_lshlrev_b32 v111, 4, v109")
    g("v_add_u32 v110, v110, v111")
    g("s_cmp_lt_u32 s99, 2")
    g("s_cselect_b32 exec_hi, 0, -1")
    g("buffer_store_dwordx4 v[112:115], v110, s[36:39], s52 offen sc1")
    g("s_mov_b64 exec, -1")
    g("s_cmp_ge_u32 s62, 80")
    g(f"s_cbranch_scc1 {l_b3}")
    g("s_cmp_lg_u32 s34, 0")
    g(f"s_cbranch_scc1 {l_b3}")
    g("s_lshr_b32 s54, s62, 4")
    g("s_and_b32 s53, s62, 15")
    g("s_lshl_b32 s55, s54, 11")
    g("s_lshl_b32 s63, s53, 7")
    g("s_add_u32 s55, s55, s63")
    g("s_lshl_b32 s63, s62, 4")
    g(f"v_lshrrev_b32 v88, 3, v{vLane}")
    g(f"v_and_b32 v89, 7, v{vLane}")
    g("v_lshlrev_b32 v90, 4, v89")
    g("v_lshlrev_b32 v91, 1, v89")
    g("v_add_u32 v91, s63, v91")
    srd(g, 48, 22, 1280)
    g("buffer_load_ushort v94, v91, s[48:51], 0 offen")
    for k in range(4):
        g(f"buffer_load_ushort v{80+k}, v91, s[40:43], 0 offen offset:{1280*k}")
    g("v_mul_u32_u24 v93, 10240, v88")
    g("v_add_u32 v93, v93, v90")
    YR = 16
    def recloads(base):
        def f():
            g(f"s_add_u32 s52, s55, {base}")
            for t in range(4):
                g(f"buffer_load_dwordx4 v[{YR+4*t}:{YR+4*t+3}], v93, s[36:39], s52 offen sc1")
                if t < 3: g("s_add_u32 s52, s52, 81920")
        return f
    def red8(R, T):
        for t in range(1, 4):
            for k in range(4): g(f"v_add_f32 v{R+k}, v{R+k}, v{R+4*t+k}")
        g("s_nop 1")
        for k in range(4): g(f"v_add_f32_dpp v{R+k}, v{R+k}, v{R+k} row_ror:8 {DPPF}")
        multi_xswap(g, [R+k for k in range(4)], [T+k for k in range(4)], 16)
        multi_xswap(g, [R+k for k in range(4)], [T+k for k in range(4)], 32)
    poll_tag(g, recloads(WS_YM), list(range(YR, YR+16)), "ym", sleep=8)
    red8(YR, YR+4)
    for k in range(4): g(f"v_lshlrev_b32 v{80+k}, 16, v{80+k}")
    g("v_lshlrev_b32 v94, 16, v94")
    for k in range(4): bf16r(g, YR+k, YR+k)
    for k in range(4): g(f"v_add_f32 v{84+k}, v{YR+k}, v94")
    for k in range(4): bf16r(g, 84+k, 84+k)
    g(f"s_branch {l_b3}")
    g(f"{l_wo}:")
    srd(g, 48, 12, 5242880)
    g("s_lshl_b32 s52, s30, 7")
    g("s_mul_i32 s52, s52, 1280")
    g("s_lshl_b32 s53, s97, 8")
    g("s_add_u32 s52, s52, s53")
    g("s_lshl_b32 s53, s34, 6")
    g("s_add_u32 s52, s52, s53")
    g(f"v_lshrrev_b32 v78, 2, v{vLane}")
    g("v_mul_u32_u24 v78, 1280, v78")
    g(f"v_and_b32 v79, 3, v{vLane}")
    g("v_lshlrev_b32 v79, 4, v79")
    g("v_add_u32 v78, v78, v79")
    for r in range(8):
        g(f"buffer_load_dwordx4 v[{WB+4*r}:{WB+4*r+3}], v78, s[48:51], s52 offen nt")
        if r < 7: g(f"s_add_u32 s52, s52, {16*1280}")
    g("s_lshl_b32 s52, s34, 13")
    g("v_add_u32 v79, s52, v8")
    g("v_mov_b32 v88, 0\nv_mov_b32 v89, 0\nv_mov_b32 v90, 0\nv_mov_b32 v91, 0")
    g("s_mov_b64 exec, 0xffff")
    g(f"ds_write_b128 v8, v[88:91] offset:{L_OL+1024}")
    g("s_mov_b64 exec, -1")
    for r in range(8):
        g(f"s_waitcnt vmcnt({7-r})")
        g(f"ds_write_b128 v79, v[{WB+4*r}:{WB+4*r+3}] offset:{L_WT + r*1024}")
    g(f"v_lshlrev_b32 v78, 9, v{vG}")
    g(f"v_lshlrev_b32 v79, 1, v{vC}")
    g("v_add_u32 v78, v78, v79")
    g("v_add_u32 v78, s52, v78")
    g("s_waitcnt lgkmcnt(0)")
    for s_ in range(4):
        for t in range(2):
            for q in range(4):
                r = WB + (s_*2+t)*4 + q
                off = L_WT + s_*2048 + q*128 + t*32
                g(f"ds_read_u16 v{r}, v78 offset:{off}")
                g(f"ds_read_u16 v{112+t*4+q}, v78 offset:{off+64}")
        g("s_waitcnt lgkmcnt(0)")
        for t in range(2):
            for q in range(4):
                r = WB + (s_*2+t)*4 + q
                g(f"v_lshl_or_b32 v{r}, v{112+t*4+q}, 16, v{r}")
    g(f"v_lshlrev_b32 v78, 8, v{vC}")
    g(f"v_lshlrev_b32 v79, 4, v{vG}")
    g("v_add_u32 v78, v78, v79")
    g(f"v_cmp_gt_u32 vcc, 4, v{vC}")
    g("v_mov_b32 v79, 1024")
    g("s_nop 0")
    g("v_cndmask_b32 v78, v79, v78, vcc")
    g(f"{l_b3}:")
    g.stamp(9)
    g("s_barrier")
    g.stamp(10)
    l_t1 = g.label("t1")
    g("s_cmp_lg_u32 s34, 0")
    g(f"s_cbranch_scc1 {l_t1}")
    g(f"v_lshrrev_b32 v108, 5, v{vLane}")
    g("v_lshlrev_b32 v110, 11, v108")
    g("v_add_u32 v110, v110, v13")
    AC = 112; STt = 144
    g("v_lshlrev_b32 v160, 5, v108")
    for s_ in range(2):
        for r in range(0, 4, 2):
            p = s_*4+r
            g(f"ds_read_b128 v[{STt+2*p}:{STt+2*p+3}], v160 offset:{L_ST + s_*64 + r*8}")
    for s_ in range(2):
        for r in range(4):
            p = s_*4+r
            g(f"ds_read_b128 v[{AC+4*p}:{AC+4*p+3}], v110 offset:{L_SP + s_*4096 + r*512}")
    g("s_waitcnt lgkmcnt(8)")
    g(f"v_max3_f32 v161, v{STt}, v{STt+2}, v{STt+4}")
    g(f"v_max3_f32 v161, v161, v{STt+6}, v{STt+8}")
    g(f"v_max3_f32 v161, v161, v{STt+10}, v{STt+12}")
    g(f"v_max_f32 v161, v161, v{STt+14}")
    for p in range(8): g(f"v_sub_f32 v{STt+2*p}, v{STt+2*p}, v161")
    for p in range(8): g(f"v_mul_f32 v{STt+2*p}, {fx(LOG2E)}, v{STt+2*p}")
    for p in range(8): g(f"v_exp_f32 v{STt+2*p}, v{STt+2*p}")
    g("s_nop 0")
    g(f"v_mul_f32 v162, v{STt}, v{STt+1}")
    for p in range(1, 8): g(f"v_fmac_f32 v162, v{STt+2*p}, v{STt+2*p+1}")
    g("s_waitcnt lgkmcnt(0)")
    for k in range(4): g(f"v_mul_f32 v{164+k}, v{AC+k}, v{STt}")
    for p in range(1, 8):
        for k in range(4): g(f"v_fmac_f32 v{164+k}, v{AC+4*p+k}, v{STt+2*p}")
    tagw(g, range(164, 168))
    g("v_lshlrev_b32 v163, 12, v108")
    g("v_add_u32 v163, v163, v13")
    g("buffer_store_dwordx4 v[164:167], v163, s[36:39], s57 offen sc1")
    g("v_mov_b32 v168, v161\nv_mov_b32 v169, v162")
    tagw(g, [168, 169])
    g("s_mov_b32 exec_lo, 1\ns_mov_b32 exec_hi, 1")
    g("buffer_store_dwordx2 v[168:169], v163, s[36:39], s57 offen offset:512 sc1")
    g("s_mov_b64 exec, -1")
    g.stamp(11)
    g(f"{l_t1}:")
    l_notunit = g.label("notunit")
    g("s_cmp_ge_u32 s97, 5")
    g(f"s_cbranch_scc1 {l_notunit}")
    g(f"v_lshrrev_b32 v108, 5, v{vLane}")
    g("v_lshlrev_b32 v110, 10, v108")
    g("v_add_u32 v111, v110, v13")
    g("s_lshl_b32 s52, s30, 2")
    g("s_add_u32 s52, s52, s34")
    g("s_lshl_b32 s52, s52, 12")
    g(f"s_add_u32 s59, s52, {WS_P1}")
    O0, O1, S0, S1 = 112, 116, 120, 122
    def h1loads(B):
        g(f"buffer_load_dwordx4 v[{B}:{B+3}], v111, s[36:39], s59 offen sc1")
        g(f"buffer_load_dwordx4 v[{B+4}:{B+7}], v111, s[36:39], s59 offen offset:2048 sc1")
        g(f"buffer_load_dwordx2 v[{B+8}:{B+9}], v110, s[36:39], s59 offen offset:512 sc1")
        g(f"buffer_load_dwordx2 v[{B+10}:{B+11}], v110, s[36:39], s59 offen offset:2560 sc1")
    h1loads.nreg = 12
    if C.pipe:
        poll_pipe(g, h1loads, 4, [176, 188, 200], O0, "h1", 126, C.gap)
    else:
        poll_tag(g, lambda: h1loads(O0), list(range(O0, O0+12)), "h1", sleep=0)
    g.stamp(12)
    g(f"v_and_b32 v{S0}, 0xffffff00, v{S0}")
    g(f"v_and_b32 v{S1}, 0xffffff00, v{S1}")
    g(f"v_max_f32 v124, v{S0}, v{S1}")
    multi_xswap(g, [124], [125], 32, "v_max_f32")
    g(f"v_sub_f32 v{S0}, v{S0}, v124")
    g(f"v_sub_f32 v{S1}, v{S1}, v124")
    g(f"v_mul_f32 v{S0}, {fx(LOG2E)}, v{S0}")
    g(f"v_mul_f32 v{S1}, {fx(LOG2E)}, v{S1}")
    g(f"v_exp_f32 v{S0}, v{S0}")
    g(f"v_exp_f32 v{S1}, v{S1}")
    g("s_nop 0")
    g(f"v_mul_f32 v128, v{S0}, v{S0+1}")
    g(f"v_fmac_f32 v128, v{S1}, v{S1+1}")
    for k in range(4): g(f"v_mul_f32 v{129+k}, v{O0+k}, v{S0}")
    for k in range(4): g(f"v_fmac_f32 v{129+k}, v{O1+k}, v{S1}")
    multi_xswap(g, [128+k for k in range(5)], [134+k for k in range(5)], 32)
    g("v_rcp_f32 v133, v128")
    g("s_nop 0")
    for k in range(4): g(f"v_mul_f32 v{134+k}, v{129+k}, v133")
    for k in range(4): g(f"v_fma_f32 v{138+k}, -v{134+k}, v128, v{129+k}")
    for k in range(4): g(f"v_fma_f32 v{134+k}, v{138+k}, v133, v{134+k}")
    g("v_cvt_pk_bf16_f32 v140, v134, v135")
    g("v_cvt_pk_bf16_f32 v141, v136, v137")
    g("v_lshrrev_b32 v134, 1, v13")
    g("s_lshl_b32 s52, s34, 8")
    g("v_add_u32 v134, s52, v134")
    g(f"ds_write_b64 v134, v[140:141] offset:{L_OL}")
    g("s_add_u32 s52, s56, s97")
    g("s_lshl_b32 s52, s52, 11")
    g("s_lshl_b32 s53, s34, 9")
    g("s_add_u32 s52, s52, s53")
    g(f"s_add_u32 s52, s52, {WS_Y}")
    g("s_waitcnt lgkmcnt(0)")
    g("s_barrier")
    for s_ in range(4):
        g(f"ds_read_b128 v[{112+4*s_}:{112+4*s_+3}], v78 offset:{L_OL + s_*64}")
    for s_ in range(4):
        g(f"s_waitcnt lgkmcnt({3-s_})")
        for t in range(2):
            c = "0" if s_ == 0 else f"v[{DD+4*t}:{DD+4*t+3}]"
            B = WB + (s_*2+t)*4
            g(f"v_mfma_f32_16x16x32_bf16 v[{DD+4*t}:{DD+4*t+3}], v[{112+4*s_}:{112+4*s_+3}], v[{B}:{B+3}], {c}")
    g("s_nop 7")
    tagw(g, range(DD, DD+8))
    g("s_mov_b64 exec, 0xffff")
    g(f"buffer_store_dwordx4 v[{DD}:{DD+3}], v11, s[36:39], s52 offen sc1")
    g(f"buffer_store_dwordx4 v[{DD+4}:{DD+7}], v11, s[36:39], s52 offen offset:256 sc1")
    g("s_mov_b64 exec, -1")
    g.stamp(13)
    if C.stamps: stamp_store(g, "s3", range(4, 15), only_wave=4)
    g("s_endpgm")
    g(f"{l_notunit}:")
    g("s_cmp_lg_u32 s34, 0")
    g("s_cbranch_scc1 L_end")
    l_st = g.label("stonly")
    g("s_cmp_ge_u32 s62, 80")
    g(f"s_cbranch_scc1 {l_st}")
    def yloads(B):
        g(f"s_add_u32 s52, s55, {WS_Y}")
        for t in range(4):
            g(f"buffer_load_dwordx4 v[{B+4*t}:{B+4*t+3}], v93, s[36:39], s52 offen sc1")
            if t < 3: g("s_add_u32 s52, s52, 81920")
    yloads.nreg = 16
    if C.pipe:
        poll_pipe(g, yloads, 4, [176, 192, 208], YR, "y", 126, C.gap)
    else:
        poll_tag(g, recloads(WS_Y), list(range(YR, YR+16)), "y", sleep=0)
    g.stamp(12)
    red8(YR, YR+4)
    for k in range(4): bf16r(g, YR+k, YR+k)
    for k in range(4): g(f"v_add_f32 v{YR+k}, v{YR+k}, v{80+k}")
    for k in range(4): bf16r(g, YR+k, YR+k)
    for k in range(4): g(f"v_add_f32 v{YR+k}, v{YR+k}, v{84+k}")
    for k in range(4): g(f"v_cvt_pk_bf16_f32 v{YR+k}, v{YR+k}, v{YR+k}")
    srd(g, 48, 24, 5120)
    g("s_mov_b64 exec, 0xff")
    for k in range(4):
        g(f"buffer_store_short v{YR+k}, v91, s[48:51], 0 offen offset:{1280*k}")
    l_ep = g.label("ep")
    g("s_cmp_lg_u32 s62, 0")
    g(f"s_cbranch_scc1 {l_ep}")
    g("s_mov_b64 exec, 1")
    g(f"v_mov_b32 v92, {WS_EPOCH}")
    g(f"buffer_store_dword v{TAG}, v92, s[36:39], 0 offen sc1")
    g(f"{l_ep}:")
    g("s_mov_b64 exec, -1")
    g.stamp(13)
    g(f"{l_st}:")
    if C.stamps: stamp_store(g, "s3", range(4, 15), only_wave=4)
    g("s_endpgm")

def gen():
    g = G()
    g(f"{KN}:")
    g("s_cmp_ge_u32 s2, 256")
    g("s_cbranch_scc1 L_end")
    if C.dbgst:
        for k in range(15): g(f"s_mov_b32 s{64+2*k}, 0")
    g.stamp(0)
    g("s_load_dwordx16 s[4:19], s[0:1], 0")
    g("s_load_dwordx8 s[20:27], s[0:1], 64")
    g("s_load_dwordx2 s[28:29], s[0:1], 96")
    g("v_lshrrev_b32 v1, 6, v0")
    g("s_lshr_b32 s30, s2, 3")
    g("v_readfirstlane_b32 s3, v1")
    g("s_and_b32 s31, s2, 7")
    g("v_and_b32 v1, 63, v0")
    if C.qmap == 0:
        g("s_lshr_b32 s32, s31, 2")
        g("s_and_b32 s33, s31, 3")
    elif C.qmap == 1:
        g("s_bfe_u32 s32, s31, 0x10001")
        g("s_lshr_b32 s33, s31, 2")
        g("s_lshl_b32 s33, s33, 1")
        g("s_and_b32 s34, s31, 1")
        g("s_or_b32 s33, s33, s34")
    elif C.qmap == 2:
        g("s_lshr_b32 s32, s31, 1")
        g("s_xor_b32 s32, s32, s31")
        g("s_and_b32 s32, s32, 1")
        g("s_lshr_b32 s33, s31, 1")

    g("s_cmp_ge_u32 s3, 4")
    g("s_cbranch_scc1 L_aux")
    if C.altmask:
        g("s_and_b32 s34, s3, 1")
        g("s_lshl_b32 s35, s32, 1")
        g("s_add_u32 s35, s35, s34")
        g(f"s_lshr_b32 s34, {C.altmask}, s35")
        g("s_and_b32 s34, s34, 1")
        g("s_cmp_eq_u32 s34, 1")
        g("s_cbranch_scc1 L_alt")
        nv = streaming(g)
        g("L_alt:")
        C.kpol, C.vpol = C.altk, C.altv
        streaming(g, "_alt")
    else:
        nv = streaming(g)
    g("L_aux:")
    aux(g)
    g("L_end:")
    g("s_endpgm")
    return g.text(), max(nv, 176)

HEADER = open("cdna_kernels/" + NAME + ".s.ref").read().split("; Override launch geometry")[0]

def build(path):
    body, nv = gen()
    nv = (nv + 3)//4*4
    assert nv <= 256
    txt = HEADER
    txt += "; Override launch geometry by editing the next line (default: block=256,\n"
    txt += f"; @launch grid=(256,1,1) block=(512,1,1) lds={LDS_BYTES}\n"
    txt += '.amdgcn_target "amdgcn-amd-amdhsa--gfx950"\n.text\n'
    txt += f".globl {KN}\n.p2align 8\n.type {KN},@function\n"
    txt += body
    txt += f""".section .rodata,"a"
.p2align 6
.amdhsa_kernel {KN}
  .amdhsa_next_free_vgpr {nv}
  .amdhsa_next_free_sgpr 102
  .amdhsa_accum_offset {nv}
  .amdhsa_group_segment_fixed_size 0
  .amdhsa_kernarg_size 104
  .amdhsa_user_sgpr_count 2
  .amdhsa_user_sgpr_kernarg_segment_ptr 1
  .amdhsa_system_sgpr_workgroup_id_x 1
.end_amdhsa_kernel
"""
    open(path, "w").write(txt)

if __name__ == "__main__":
    ap = argparse.ArgumentParser()
    ap.add_argument("-o", default="k.s")
    ap.add_argument("--stamps", action="store_true")
    ap.add_argument("--win", type=int, default=6)
    ap.add_argument("--sleepg", type=int, default=16)
    ap.add_argument("--kpol", default="nt")
    ap.add_argument("--vpol", default="nt")
    ap.add_argument("--nokx", action="store_true")
    ap.add_argument("--r4", type=int, default=0)
    ap.add_argument("--r2", type=int, default=0)
    ap.add_argument("--qmap", type=int, default=2)
    ap.add_argument("--dbgst", action="store_true")
    ap.add_argument("--pipe", action="store_true")
    ap.add_argument("--gap", type=int, default=6)
    ap.add_argument("--pvdot", action="store_true")
    ap.add_argument("--early", type=int, default=0)
    ap.add_argument("--altmask", type=int, default=0)
    ap.add_argument("--altk", default="nt")
    ap.add_argument("--altv", default="nt")
    ap.add_argument("--sz", default="4,2,1")
    ap.add_argument("--alt", action="store_true")
    ap.add_argument("--win2", type=int, default=6)
    ap.add_argument("--win2at", type=int, default=1000)
    a = ap.parse_args()
    C.win2 = a.win2; C.win2_at = a.win2at
    C.alt = a.alt
    C.sz = tuple(int(x) for x in a.sz.split(","))
    C.altmask = a.altmask; C.altk = a.altk.replace("_"," "); C.altv = a.altv.replace("_"," ")
    C.pvdot = a.pvdot; C.early = a.early > 0; C.early_n = a.early
    C.pipe = a.pipe; C.gap = a.gap
    C.dbgst = a.dbgst
    if a.dbgst: a.stamps = True
    C.qmap = a.qmap
    C.stamps = a.stamps; C.win = a.win; C.sleepg = a.sleepg
    C.kpol = a.kpol.replace("_"," "); C.vpol = a.vpol.replace("_"," ")
    C.kx = not a.nokx; C.r4 = a.r4; C.r2 = a.r2
    build(a.o)
```

```python
import sys, math
def gen(name, NWG, W, N, flags="", tile_keys=64, stagger=0, pattern="tile", valu=4, remap=None):
    region = (256<<20)//NWG
    LPT = tile_keys*256//1024
    TB = tile_keys*256
    pair = 2*LPT
    L = pair*N//math.gcd(pair,N)
    ntp = region//(TB*W)
    bodies = ntp // (L//pair)
    assert bodies*(L//pair)==ntp, (ntp, L, pair)
    o=[]
    A=o.append
    A(f".globl {name}\n.p2align 8\n.type {name},@function\n{name}:")
    A(f"s_cmp_ge_u32 s2, {NWG}\ns_cbranch_scc1 L_done_{name}")
    A("s_memrealtime s[24:25]")
    A("s_load_dwordx2 s[28:29], s[0:1], 96")
    A("s_load_dwordx4 s[4:7], s[0:1], 8")
    A("s_load_dwordx2 s[20:21], s[0:1], 88")
    A("v_lshrrev_b32 v1, 6, v0")
    A("v_and_b32 v2, 63, v0")
    A("v_lshlrev_b32 v2, 4, v2   ; lane*16")
    A("s_nop 0")
    A("v_readfirstlane_b32 s3, v1")
    A("s_waitcnt lgkmcnt(0)")
    A("s_mov_b32 s30, s2")
    if remap=="xor1":
        A("s_xor_b32 s30, s2, 1")
    elif remap=="tr":
        A("s_and_b32 s30, s2, 7\ns_lshl_b32 s30, s30, 5\ns_lshr_b32 s31, s2, 3\ns_add_u32 s30, s30, s31")
    A(f"s_mul_i32 s16, s30, {region}")
    A("s_add_u32 s8, s4, s16\ns_addc_u32 s9, s5, 0")
    A(f"s_mov_b32 s10, {region}\ns_mov_b32 s11, 0x20000")
    A("s_add_u32 s12, s6, s16\ns_addc_u32 s13, s7, 0")
    A(f"s_mov_b32 s14, {region}\ns_mov_b32 s15, 0x20000")
    A(f"s_mul_i32 s17, s3, {TB}")
    A("s_mov_b32 s18, 0")
    A("v_mov_b32 v3, 0")
    base=8
    def slot(i): return base+4*(i%N)
    def load(i):
        tp = i//pair; r = i%pair
        srd = "s[8:11]" if r<LPT else "s[12:15]"
        r2 = r%LPT
        off = tp*W*TB + r2*1024
        hi = off & ~4095; lo = off & 4095
        if lo==0 or load.last!=hi:
            A(f"s_add_u32 s19, s17, {hi}")
            load.last=hi
        s=slot(i)
        A(f"buffer_load_dwordx4 v[{s}:{s+3}], v2, {srd}, s19 offen offset:{lo} {flags}")
    load.last=None
    for i in range(N): load(i)
    A(f"L_loop_{name}:")
    load.last=None
    for i in range(L):
        A(f"s_waitcnt vmcnt({N-1})")
        s=slot(i)
        for k in range(valu):
            A(f"v_xor_b32 v3, v3, v{s+k%4}")
        load(i+N)
    A(f"s_add_u32 s17, s17, {(L//pair)*W*TB}")
    A("s_add_u32 s18, s18, 1")
    A(f"s_cmp_lt_u32 s18, {bodies}")
    A(f"s_cbranch_scc1 L_loop_{name}")
    A("s_waitcnt vmcnt(0)")
    A("v_cmp_eq_u32 vcc, 0x12345677, v3")
    A("s_and_saveexec_b64 s[22:23], vcc")
    A(f"s_cbranch_execz L_st_{name}")
    A("v_mov_b32 v4, 0")
    A("global_store_dword v4, v3, s[20:21]")
    A(f"L_st_{name}:")
    A("s_mov_b64 exec, s[22:23]")
    A("s_barrier")
    A("s_memrealtime s[26:27]")
    A("s_waitcnt lgkmcnt(0)")
    A("v_mov_b32 v4, s24\nv_mov_b32 v5, s25\nv_mov_b32 v6, s26\nv_mov_b32 v7, s27")
    A("s_lshl_b32 s16, s2, 4\nv_mov_b32 v1, s16")
    A("v_cmp_eq_u32 vcc, 0, v0")
    A("s_and_saveexec_b64 s[22:23], vcc")
    A(f"s_cbranch_execz L_done_{name}")
    A("global_store_dwordx4 v1, v[4:7], s[28:29]")
    A(f"L_done_{name}:\ns_endpgm")
    nv = base+4*N
    kd = f""".section .rodata,"a"
.p2align 6
.amdhsa_kernel {name}
  .amdhsa_next_free_vgpr {nv}
  .amdhsa_next_free_sgpr 32
  .amdhsa_accum_offset {(nv+3)//4*4}
  .amdhsa_group_segment_fixed_size 0
  .amdhsa_kernarg_size 104
  .amdhsa_user_sgpr_count 2
  .amdhsa_user_sgpr_kernarg_segment_ptr 1
  .amdhsa_system_sgpr_workgroup_id_x 1
.end_amdhsa_kernel
.text
"""
    md = f"""  - .name: {name}
    .symbol: {name}.kd
    .kernarg_segment_size: 104
    .kernarg_segment_align: 8
    .group_segment_fixed_size: 0
    .private_segment_fixed_size: 0
    .wavefront_size: 64
    .sgpr_count: 32
    .vgpr_count: {nv}
    .max_flat_workgroup_size: {W*64}
    .args:
      - {{.name: kernargs, .size: 104, .offset: 0, .value_kind: by_value}}
"""
    return "\n".join(o)+"\n"+kd, md

def build(fn, kernels):
    txt = '.amdgcn_target "amdgcn-amd-amdhsa--gfx950"\n.text\n'
    mds=""
    for k in kernels:
        body, md = k
        txt += body; mds += md
    txt += ".amdgpu_metadata\n---\namdhsa.version: [1, 2]\namdhsa.kernels:\n"+mds+"...\n.end_amdgpu_metadata\n"
    open(fn,"w").write(txt)

if __name__=="__main__":
    ks=[]; specs=[]
    for (NWG,W,N,fl,rm) in [(256,8,16,"nt",None),(256,8,16,"nt","xor1"),(256,8,16,"nt","tr"),(256,16,16,"nt",None),(256,16,16,"nt","xor1"),(256,16,16,"nt","tr"),(256,4,32,"nt","tr")]:
        name=f"st_g{NWG}_w{W}_n{N}_{fl.replace(' ','') or 'def'}_{rm}"
        ks.append(gen(name,NWG,W,N,fl,remap=rm)); specs.append(f"stream.co:{name}:{NWG}:{W*64}:0")
    build("stream.s",ks)
    open("specs.txt","w").write(" ".join(specs))
```

```python
import sys, math, ast
from gen_stream import build
def gen(name, W, tile_keys, D, group, rot=0, flags="nt", valu=4, cstride=256, order="kv"):
    NWG=256
    LPT = tile_keys*256//1024
    TB = tile_keys*256
    N = 2*LPT
    gb = 2<<20
    ntiles = gb//TB
    o=[]; A=o.append
    A(f".globl {name}\n.p2align 8\n.type {name},@function\n{name}:")
    A(f"s_cmp_ge_u32 s2, {NWG}\ns_cbranch_scc1 L_done_{name}")
    A("s_memrealtime s[24:25]")
    A("s_load_dwordx2 s[28:29], s[0:1], 96")
    A("s_load_dwordx4 s[4:7], s[0:1], 8")
    A("s_load_dwordx2 s[20:21], s[0:1], 88")
    A("v_and_b32 v2, 63, v0")
    A("v_lshlrev_b32 v2, 4, v2   ; lane*16")
    A("v_lshrrev_b32 v1, 6, v0\ns_nop 0\nv_readfirstlane_b32 s31, v1")
    if group=="wb":
        nw = 8*W//4
        A("s_and_b32 s36, s31, 3\ns_lshr_b32 s30, s2, 3\ns_lshl_b32 s30, s30, 2\ns_add_u32 s30, s30, s36")
        A(f"s_and_b32 s35, s2, 7\ns_mul_i32 s35, s35, {W//4}\ns_lshr_b32 s36, s31, 2\ns_add_u32 s35, s35, s36")
    elif group=="wb2":
        nw = 4*W//2
        A("s_and_b32 s36, s31, 1\ns_lshr_b32 s30, s2, 2\ns_lshl_b32 s30, s30, 1\ns_add_u32 s30, s30, s36")
        A(f"s_and_b32 s35, s2, 3\ns_mul_i32 s35, s35, {W//2}\ns_lshr_b32 s36, s31, 1\ns_add_u32 s35, s35, s36")
    elif group=="wb2s":
        nw = 4*W//2
        A("s_and_b32 s36, s31, 1\ns_lshr_b32 s30, s2, 3\ns_lshl_b32 s30, s30, 1\ns_and_b32 s37, s2, 1\ns_add_u32 s30, s30, s37\ns_lshl_b32 s30, s30, 1\ns_add_u32 s30, s30, s36")
        A("s_lshr_b32 s35, s2, 3\ns_lshl_b32 s30, s35, 2\ns_lshl_b32 s37, s37, 1\ns_add_u32 s30, s30, s37\ns_add_u32 s30, s30, s36")
        A(f"s_bfe_u32 s35, s2, 0x20001\ns_mul_i32 s35, s35, {W//2}\ns_lshr_b32 s36, s31, 1\ns_add_u32 s35, s35, s36")
    elif group=="pair":
        nw = 2*W
        A("s_lshr_b32 s30, s2, 1")
        A(f"s_and_b32 s35, s2, 1\ns_mul_i32 s35, s35, {W}\ns_add_u32 s35, s35, s31")
    A("s_waitcnt lgkmcnt(0)")
    A(f"s_mul_i32 s16, s30, {gb}")
    A("s_add_u32 s8, s4, s16\ns_addc_u32 s9, s5, 0")
    A(f"s_mov_b32 s10, {gb}\ns_mov_b32 s11, 0x20000")
    A("s_add_u32 s12, s6, s16\ns_addc_u32 s13, s7, 0")
    A(f"s_mov_b32 s14, {gb}\ns_mov_b32 s15, 0x20000")
    A(f"s_mul_i32 s16, s30, {cstride}")
    A("s_add_u32 s16, s16, 0x100000")
    A("s_add_u32 s32, s28, s16\ns_addc_u32 s33, s29, 0")
    A(f"s_mul_i32 s38, s30, {rot}")
    A("v_mov_b32 v3, 0\nv_mov_b32 v4, 0\nv_mov_b32 v5, 1")
    base=16
    def slot(i): return base+4*(i%(N*D))
    def tile_off(treg, dst):
        A(f"s_add_u32 {dst}, {treg}, s38")
        A(f"s_and_b32 {dst}, {dst}, {ntiles-1}")
        A(f"s_mul_i32 {dst}, {dst}, {TB}")
        A(f"s_cmp_ge_u32 {treg}, {ntiles}")
        A(f"s_cselect_b32 {dst}, {gb}, {dst}")
    def load(i, sreg, d):
        if order=="kv":
            srd = "s[8:11]" if i<LPT else "s[12:15]"; r2=i%LPT
        off=r2*1024
        hi=off&~4095; lo=off&4095
        if lo==0:
            A(f"s_add_u32 s19, {sreg}, {hi}")
        s=slot(i+d*N)
        A(f"buffer_load_dwordx4 v[{s}:{s+3}], v2, {srd}, s19 offen offset:{lo} {flags}")
    def atomic(d):
        A("s_mov_b64 exec, 1")
        A(f"global_atomic_add v{8+d}, v4, v5, s[32:33] sc0 sc1")
        A("s_mov_b64 exec, -1")
    for d in range(D):
        atomic(d)
        A(f"s_add_u32 s17, s35, {d*nw}")
        tile_off("s17","s34")
        for i in range(N): load(i,"s34",d)
    dyn0 = D*nw
    A(f"L_loop_{name}:")
    for d in range(D):
        A(f"s_waitcnt vmcnt({N*D + D - 1})")
        A(f"v_readfirstlane_b32 s18, v{8+d}")
        A(f"s_add_u32 s18, s18, {dyn0}")
        atomic(d)
        tile_off("s18","s34")
        for i in range(N):
            A(f"s_waitcnt vmcnt({N*D + D - 1})")
            s=slot(i+d*N)
            for k in range(valu):
                A(f"v_xor_b32 v3, v3, v{s+k%4}")
            load(i,"s34",d)
        A(f"s_mov_b32 s{40+d}, s18")
        nd=(d+1)%D
        if D==1:
            A(f"s_cmp_ge_u32 s18, {ntiles}\ns_cbranch_scc1 L_fin_{name}")
        else:
            A(f"s_cmp_ge_u32 s{40+nd}, {ntiles}\ns_cbranch_scc1 L_fin_{name}")
    A(f"s_branch L_loop_{name}")
    A(f"L_fin_{name}:")
    A("s_waitcnt vmcnt(0)")
    A("v_cmp_eq_u32 vcc, 0x12345677, v3")
    A("s_and_saveexec_b64 s[22:23], vcc")
    A(f"s_cbranch_execz L_st_{name}")
    A("v_mov_b32 v4, 0")
    A("global_store_dword v4, v3, s[20:21]")
    A(f"L_st_{name}:")
    A("s_mov_b64 exec, s[22:23]")
    A("s_barrier")
    A("s_memrealtime s[26:27]")
    A("s_waitcnt lgkmcnt(0)")
    A("v_mov_b32 v4, s24\nv_mov_b32 v5, s25\nv_mov_b32 v6, s26\nv_mov_b32 v7, s27")
    A("s_lshl_b32 s16, s2, 4\nv_mov_b32 v1, s16")
    A("v_cmp_eq_u32 vcc, 0, v0")
    A("s_and_saveexec_b64 s[22:23], vcc")
    A(f"s_cbranch_execz L_done_{name}")
    A("global_store_dwordx4 v1, v[4:7], s[28:29]")
    A(f"L_done_{name}:\ns_endpgm")
    txt="\n".join(o)
    init="\n".join(f"s_mov_b32 s{40+d}, 0" for d in range(D))
    txt=txt.replace(f"L_loop_{name}:", init+f"\nL_loop_{name}:",1)
    nv = base+4*N*D
    assert N*D+D-1<=63
    kd = f""".section .rodata,"a"
.p2align 6
.amdhsa_kernel {name}
  .amdhsa_next_free_vgpr {nv}
  .amdhsa_next_free_sgpr 48
  .amdhsa_accum_offset {(nv+3)//4*4}
  .amdhsa_group_segment_fixed_size 0
  .amdhsa_kernarg_size 104
  .amdhsa_user_sgpr_count 2
  .amdhsa_user_sgpr_kernarg_segment_ptr 1
  .amdhsa_system_sgpr_workgroup_id_x 1
.end_amdhsa_kernel
.text
"""
    md = f"""  - .name: {name}
    .symbol: {name}.kd
    .kernarg_segment_size: 104
    .kernarg_segment_align: 8
    .group_segment_fixed_size: 0
    .private_segment_fixed_size: 0
    .wavefront_size: 64
    .sgpr_count: 48
    .vgpr_count: {nv}
    .max_flat_workgroup_size: {W*64}
    .args:
      - {{.name: kernargs, .size: 104, .offset: 0, .value_kind: by_value}}
"""
    return txt+"\n"+kd, md

if __name__=="__main__":
    ks=[]; specs=[]
    cfgs=ast.literal_eval(sys.argv[1])
    for (W,tk,D,grp,rot) in cfgs:
        name=f"d2_w{W}_t{tk}_d{D}_{grp}_r{rot}"
        ks.append(gen(name,W,tk,D,grp,rot)); specs.append(f"dyn2.co:{name}:256:{W*64}:0")
    build("dyn2.s",ks)
    open("specs_dyn2.txt","w").write(" ".join(specs))
```
